```python
import torch

def _softmax(x, axis=-1):
    return torch.softmax(x, dim=axis)
def _gelu(x):
    return torch.nn.functional.gelu(x, approximate="tanh")
def _silu(x):
    return torch.nn.functional.silu(x)
def _sigmoid(x):
    return torch.sigmoid(x)
def _layernorm(x, axis=-1, eps=1e-5):
    m = x.mean(dim=axis, keepdim=True)
    v = x.var(dim=axis, keepdim=True, unbiased=False)
    return (x - m) / torch.sqrt(v + eps)
def _scatter_add(tgt, idx, src, axis=0):
    return tgt.clone().index_add_(axis, idx, src)
def _segment_sum(src, seg, n):
    out = torch.zeros((n,) + src.shape[1:], dtype=src.dtype)
    return out.index_add_(0, seg, src)
def _pad(x, pw):
    flat = tuple(v for pair in reversed(pw) for v in pair)
    return torch.nn.functional.pad(x, flat)

kernel_name = 'concat_heads__mha_block_cached__gqa_block_cached__near_ridge'

def setup_inputs():

    _w = (lambda a: (lambda t: t.to(torch.bfloat16) if t.is_floating_point() else t)(torch.as_tensor(a)))
    def _A_setup():
        B, Sq, D = 8, 304, 512
        H, Sk, Dh = 32, 1024, 128
        return {
            "x": _w((lambda *s: torch.randn(*s, dtype=torch.bfloat16) * 0.8)(B, Sq, D)),
            "k_cache": _w((lambda *s: torch.randn(*s, dtype=torch.bfloat16) * 0.8)(B, H, Sk, Dh)),
            "v_cache": _w((lambda *s: torch.randn(*s, dtype=torch.bfloat16) * 0.05)(B, H, Sk, Dh)),
            "wq": _w((lambda *s: torch.randn(*s, dtype=torch.bfloat16) * 0.8)(D, H * Dh) * (D ** -0.5)),
            "wo": _w((lambda *s: torch.randn(*s, dtype=torch.bfloat16) * 0.05)(H * Dh, D) * ((H * Dh) ** -0.5)),
        }
    _A_in = _A_setup()

    def _B_setup():
        B, Sq, D = 8, 304, 512
        Hq, Hkv, Sk, Dh = 32, 32, 1024, 128
        assert Hq % Hkv == 0, (Hq, Hkv)
        return {
            "x": _w((lambda *s: torch.randn(*s, dtype=torch.bfloat16) * 0.8)(B, Sq, D)),
            "k_cache": _w((lambda *s: torch.randn(*s, dtype=torch.bfloat16) * 0.8)(B, Hkv, Sk, Dh)),
            "v_cache": _w((lambda *s: torch.randn(*s, dtype=torch.bfloat16) * 0.05)(B, Hkv, Sk, Dh)),
            "wq": _w((lambda *s: torch.randn(*s, dtype=torch.bfloat16) * 0.8)(D, Hq * Dh) * (D ** -0.5)),
            "wo": _w((lambda *s: torch.randn(*s, dtype=torch.bfloat16) * 0.05)(Hq * Dh, D) * ((Hq * Dh) ** -0.5)),
        }
    _B_in = _B_setup()

    return {
        "A_x": _A_in["x"],
        "A_k_cache": _A_in["k_cache"],
        "A_v_cache": _A_in["v_cache"],
        "A_wq": _A_in["wq"],
        "A_wo": _A_in["wo"],
        "B_x": _B_in["x"],
        "B_k_cache": _B_in["k_cache"],
        "B_v_cache": _B_in["v_cache"],
        "B_wq": _B_in["wq"],
        "B_wo": _B_in["wo"],
    }

def reference(A_x, A_k_cache, A_v_cache, A_wq, A_wo, B_x, B_k_cache, B_v_cache, B_wq, B_wo):
    def _A_ref(x, k_cache, v_cache, wq, wo):
        B, Sq, D = x.shape
        H, Dh = 32, 128
        q = (lambda x, *d: x.permute(*d))((x @ wq).reshape(B, Sq, H, Dh), 0, 2, 1, 3)
        scores = torch.einsum("bhqd,bhkd->bhqk", q, k_cache) * (Dh ** -0.5)
        p = _softmax(scores, axis=-1)
        o = torch.einsum("bhqk,bhkd->bhqd", p, v_cache)
        return (lambda x, *d: x.permute(*d))(o, 0, 2, 1, 3).reshape(B, Sq, H * Dh) @ wo

    def _B_ref(x, k_cache, v_cache, wq, wo):
        B, Sq, D = x.shape
        Hq, Dh = 32, 128
        Hkv = k_cache.shape[1]
        rep = Hq // Hkv
        q = (lambda x, *d: x.permute(*d))((x @ wq).reshape(B, Sq, Hq, Dh), 0, 2, 1, 3)
        k = (lambda x, n, axis: torch.repeat_interleave(x, n, dim=axis))(k_cache, rep, axis=1)
        v = (lambda x, n, axis: torch.repeat_interleave(x, n, dim=axis))(v_cache, rep, axis=1)
        scores = torch.einsum("bhqd,bhkd->bhqk", q, k) * (Dh ** -0.5)
        p = _softmax(scores, axis=-1)
        o = torch.einsum("bhqk,bhkd->bhqd", p, v)
        return (lambda x, *d: x.permute(*d))(o, 0, 2, 1, 3).reshape(B, Sq, Hq * Dh) @ wo

    a = _A_ref(A_x, A_k_cache, A_v_cache, A_wq, A_wo)
    b = _B_ref(B_x, B_k_cache, B_v_cache, B_wq, B_wo)
    return torch.concatenate([a, b], axis=-1)
```

```python
import re

_REG = re.compile(r"^([vas])(\d+)$")
_RNG = re.compile(r"^([vas])\[(\d+):(\d+)\]$")


def regs_of(op):
    op = op.strip()
    if op.startswith("-"):
        op = op[1:]
    if op.startswith("abs(") or op.startswith("|"):
        op = op.strip("|").replace("abs(", "").replace(")", "")
    m = _REG.match(op)
    if m:
        return [(m.group(1), int(m.group(2)))]
    m = _RNG.match(op)
    if m:
        return [(m.group(1), i) for i in range(int(m.group(2)), int(m.group(3)) + 1)]
    if op in ("vcc", "exec", "m0", "scc"):
        return [(op, 0)]
    return []


TRANS = ("v_exp_f32", "v_rcp_f32", "v_log_f32", "v_rsq_f32", "v_sqrt_f32")


class Ins:
    def __init__(self, text, tag=None, waittag=None, comment=None):
        self.text = text
        self.tag = tag
        self.waittag = waittag
        self.comment = comment
        self.pre_lgkm = None
        self.pre_vm = None
        self.pre_nop = 0
        self.rd = set()
        self.wr = set()
        self.srcC = set()
        self.srcAB = set()
        self.kind = None
        self.parse()

    def parse(self):
        t = self.text
        if t == "":
            self.kind = "none"
            return
        if t.endswith(":"):
            self.kind = "label"
            return
        parts = t.split(None, 1)
        mn = parts[0]
        self.mn = mn
        rest = parts[1] if len(parts) > 1 else ""
        ops = [o.strip() for o in rest.split(",")]
        mods = ""
        if ops and " " in ops[-1]:
            last, mods = ops[-1].split(None, 1)
            ops[-1] = last
        R = lambda o: set(regs_of(o))
        if mn.startswith("v_mfma"):
            self.kind = "mfma"
            self.wr = R(ops[0])
            self.srcAB = R(ops[1]) | R(ops[2])
            self.srcC = R(ops[3])
            self.rd = self.srcAB | self.srcC
        elif mn.startswith("ds_read"):
            self.kind = "lds_r"
            self.wr = R(ops[0])
            self.rd = R(ops[1])
        elif mn.startswith("ds_write") or mn.startswith("ds_or") or mn.startswith("ds_add"):
            self.kind = "lds_w"
            self.rd = R(ops[0]) | R(ops[1])
        elif mn.startswith("buffer_load"):
            if re.search(r"\blds\b", mods):
                self.kind = "dma"
                self.rd = R(ops[0]) | R(ops[1]) | R(ops[2]) | {("m0", 0)}
            else:
                self.kind = "vmem_ld"
                self.wr = R(ops[0])
                self.rd = R(ops[1]) | R(ops[2]) | R(ops[3])
        elif mn.startswith("buffer_store"):
            self.kind = "vmem_st"
            self.data = R(ops[0])
            self.rd = R(ops[0]) | R(ops[1]) | R(ops[2]) | R(ops[3])
        elif mn.startswith("buffer_atomic"):
            self.kind = "vmem_ld" if "sc0" in mods else "vmem_st"
            self.data = R(ops[0])
            self.rd = R(ops[0]) | R(ops[1]) | R(ops[2]) | R(ops[3])
            if "sc0" in mods:
                self.wr = R(ops[0])
        elif mn in ("buffer_wbl2", "buffer_inv"):
            self.kind = "vmem_st"
            self.data = set()
        elif mn.startswith("v_"):
            self.kind = "trans" if mn in TRANS else "valu"
            if mn.startswith("v_permlane"):
                self.wr = R(ops[0]) | R(ops[1])
                self.rd = set(self.wr)
            else:
                self.wr = R(ops[0])
                for o in ops[1:]:
                    o = o.split()[0] if o else o
                    self.rd |= R(o)
                if mn.startswith("v_fmac"):
                    self.rd |= self.wr
                if "_co_" in mn:
                    self.wr |= R(ops[1])
        elif mn == "s_waitcnt":
            self.kind = "wait"
        elif mn == "s_barrier":
            self.kind = "barrier"
        elif mn == "s_nop":
            self.kind = "nop"
            self.n = int(ops[0])
        elif mn.startswith("s_cbranch") or mn == "s_branch" or mn == "s_endpgm":
            self.kind = "branch"
        elif mn.startswith("s_memtime") or mn.startswith("s_memrealtime"):
            self.kind = "smem"
            self.wr = R(ops[0])
        elif mn.startswith("s_load"):
            self.kind = "smem"
            self.wr = R(ops[0])
            self.rd = R(ops[1])
        elif mn.startswith("s_cmp") or mn.startswith("s_bitcmp"):
            self.kind = "salu"
            for o in ops:
                self.rd |= R(o)
        elif mn.startswith("s_"):
            self.kind = "salu"
            if mn in ("s_setprio", "s_sleep"):
                return
            self.wr = R(ops[0])
            for o in ops[1:]:
                self.rd |= R(o)
            if "saveexec" in mn:
                self.wr |= {("exec", 0)}
        else:
            raise ValueError("cannot parse " + t)

    def is_valu(self):
        return self.kind in ("valu", "trans")

    def is_vmem(self):
        return self.kind in ("dma", "vmem_ld", "vmem_st")

    def is_lds(self):
        return self.kind in ("lds_r", "lds_w")

    def lines(self):
        out = []
        w = []
        if self.pre_vm is not None:
            w.append("vmcnt(%d)" % self.pre_vm)
        if self.pre_lgkm is not None:
            w.append("lgkmcnt(%d)" % self.pre_lgkm)
        if w:
            out.append("    s_waitcnt " + " ".join(w))
        n = self.pre_nop
        while n > 0:
            k = min(n, 16)
            out.append("    s_nop %d" % (k - 1))
            n -= k
        if self.kind == "label":
            out.append(self.text)
        elif self.text:
            out.append("    " + self.text + (("    ; " + self.comment) if self.comment else ""))
        return out


class Loop:
    def __init__(self, name, body, count, strides=None):
        self.name, self.body, self.count, self.strides = name, body, count, strides or {}


class Cond:
    def __init__(self, body, loop=None, iters=None):
        self.body, self.loop, self.iters = body, loop, iters


def flatten(nodes):
    for n in nodes:
        if isinstance(n, Ins):
            yield n
        else:
            yield from flatten(n.body)


def trace(nodes, iters=None, off=None):
    iters = iters or {}
    off = off or {}
    for n in nodes:
        if isinstance(n, Ins):
            yield n, off
        elif isinstance(n, Loop):
            for it in range(n.count):
                i2 = dict(iters)
                i2[n.name] = it
                o2 = dict(off)
                for k, v in n.strides.items():
                    o2[k] = o2.get(k, 0) + v * it
                yield from trace(n.body, i2, o2)
        elif isinstance(n, Cond):
            if n.iters is not None and iters.get(n.loop) in n.iters:
                yield from trace(n.body, iters, off)


def side_paths(nodes):
    for n in nodes:
        if isinstance(n, Cond):
            if n.iters is None:
                yield n.body
            yield from side_paths(n.body)
        elif isinstance(n, Loop):
            yield from side_paths(n.body)


def insert_waits(nodes, lds_age=9, hoist=True):
    tr = list(trace(nodes))
    lds_ops = []
    vm_ops = []
    lds_done = 0
    vm_done = 0
    lds_pend = {}
    vm_pend = {}
    issued_at = []
    time = 0
    for i, (ins, off) in enumerate(tr):
        issued_at.append((len(lds_ops), len(vm_ops), time))
        if ins.pre_lgkm is not None:
            lds_done = max(lds_done, len(lds_ops) - ins.pre_lgkm)
        if ins.pre_vm is not None:
            vm_done = max(vm_done, len(vm_ops) - ins.pre_vm)
        touched = ins.rd | ins.wr
        need_l = max([lds_pend[r] for r in touched if r in lds_pend] + [-1])
        need_v = max([vm_pend[r] for r in touched if r in vm_pend] + [-1])
        if ins.waittag:
            for (nm, val) in ins.waittag:
                if nm == "lds_all":
                    need_l = max(need_l, len(lds_ops) - 1)
                    continue
                dv = val + off.get(nm, 0)
                idx = [k for k, (o, tg) in enumerate(vm_ops) if tg == (nm, dv)]
                assert idx, ("wait for a tag never issued", nm, dv, ins.text)
                need_v = max(need_v, idx[-1])
        j = i
        if hoist and ins.kind == "mfma":
            k = i - 1
            while k >= 0 and tr[k][0].kind not in ("mfma", "label", "branch", "barrier") and i - k < 6:
                k -= 1
            if k >= 0 and tr[k][0].kind == "mfma":
                j = k + 1
        if need_l >= lds_done:
            jj = j if need_l < issued_at[j][0] else i
            cnt, _, tm = issued_at[jj]
            up = need_l
            while up + 1 < cnt and tm - lds_ops[up + 1][1] >= lds_age:
                up += 1
            n = min(15, cnt - (up + 1))
            t = tr[jj][0]
            t.pre_lgkm = n if t.pre_lgkm is None else min(t.pre_lgkm, n)
            lds_done = max(lds_done, cnt - n)
        if need_v >= vm_done:
            jj = j if need_v < issued_at[j][1] else i
            cnt = issued_at[jj][1]
            n = min(63, cnt - (need_v + 1))
            t = tr[jj][0]
            t.pre_vm = n if t.pre_vm is None else min(t.pre_vm, n)
            vm_done = max(vm_done, cnt - n)
        if ins.kind == "wait":
            m = re.search(r"vmcnt\((\d+)\)", ins.text)
            if m:
                vm_done = max(vm_done, len(vm_ops) - int(m.group(1)))
            m = re.search(r"lgkmcnt\((\d+)\)", ins.text)
            if m:
                lds_done = max(lds_done, len(lds_ops) - int(m.group(1)))
        if ins.is_lds():
            for r in ins.wr:
                lds_pend[r] = len(lds_ops)
            lds_ops.append((ins, time))
        if ins.is_vmem():
            for r in ins.wr:
                vm_pend[r] = len(vm_ops)
            tg = None
            if ins.tag:
                tg = (ins.tag[0], ins.tag[1] + off.get(ins.tag[0], 0))
            vm_ops.append((ins, tg))
        if ins.kind == "mfma":
            time += 1
    for sp in side_paths(nodes):
        insert_waits(sp, lds_age, hoist)


MF_D_TO_VALU = 8
MF_D_TO_AB = 8
MF_C_WAR = 3


def required_gap(p, c):
    need = 0
    vg = lambda s: {r for r in s if r[0] in "va"}
    sg = lambda s: {r for r in s if r[0] in ("s", "vcc")}
    if p.kind == "mfma":
        if c.kind == "mfma":
            if p.wr & c.srcAB:
                need = max(need, MF_D_TO_AB)
            if (p.wr & c.srcC) and p.wr != c.srcC:
                need = max(need, 6)
        elif c.is_valu() or c.is_vmem() or c.is_lds():
            if p.wr & (c.rd | c.wr):
                need = max(need, MF_D_TO_VALU)
            if c.is_valu() and (p.srcC & c.wr):
                need = max(need, MF_C_WAR)
    if p.is_valu():
        if c.kind == "mfma" and (vg(p.wr) & c.rd):
            need = max(need, 2)
        if p.kind == "trans" and c.kind == "valu" and (p.wr & c.rd):
            need = max(need, 1)
        if c.is_valu() and c.mn.startswith("v_permlane") and (vg(p.wr) & c.rd):
            need = max(need, 2)
        if c.is_valu() and c.mn.startswith("v_read") and (vg(p.wr) & c.rd):
            need = max(need, 1)
        if sg(p.wr):
            if c.is_valu() and (sg(p.wr) & c.rd):
                need = max(need, 2)
            if c.is_vmem() and (sg(p.wr) & c.rd):
                need = max(need, 5)
            if c.kind in ("salu",) and (sg(p.wr) & c.rd):
                need = max(need, 2)
            if c.kind == "branch" and "vcc" in c.text and ("vcc", 0) in p.wr:
                need = max(need, 5)
    if p.kind == "salu" and ("m0", 0) in p.wr and c.kind == "dma":
        need = max(need, 1)
    if p.kind == "salu" and ("exec", 0) in p.wr and c.kind == "mfma":
        need = max(need, 4)
    if p.kind == "vmem_st" and len(p.data) > 2 and (p.data & c.wr) and c.kind != "salu":
        need = max(need, 2)
    if p.kind == "lds_w" and (vg(p.rd) & c.wr) and c.is_valu():
        need = max(need, 2)
    return need


def states(ins):
    n = ins.pre_nop
    if ins.pre_lgkm is not None or ins.pre_vm is not None:
        n += 1
    if ins.kind == "nop":
        n += ins.n + 1
    elif ins.kind not in ("label", "none"):
        n += 1
    return n


def insert_nops(nodes, report=None):
    tr = [x[0] for x in trace(nodes)]
    for i, c in enumerate(tr):
        if c.kind in ("label", "none", "nop", "wait", "barrier"):
            continue
        dist = c.pre_nop + (1 if (c.pre_lgkm is not None or c.pre_vm is not None) else 0)
        k = i - 1
        while k >= 0 and dist < 10:
            p = tr[k]
            need = required_gap(p, c)
            if need > dist:
                add = need - dist
                c.pre_nop += add
                dist += add
                if report is not None:
                    report.append((add, p.text, c.text))
            dist += states(p)
            k -= 1
    for sp in side_paths(nodes):
        insert_nops(sp, report)


def estimate_cycles(nodes):
    t = 0
    last_m = -100
    prev_valu = False
    nm = 0
    for ins, _ in trace(nodes):
        if ins.pre_lgkm is not None or ins.pre_vm is not None:
            t += 4
        t += 4 * ins.pre_nop
        k = ins.kind
        if k in ("label", "none"):
            continue
        if k == "mfma":
            t = max(t, last_m + 16)
            last_m = t
            t += 4
            nm += 1
            prev_valu = False
        elif ins.is_valu():
            t = max(t, last_m + 8)
            t += 8 if k == "trans" else 4
            prev_valu = True
        elif ins.is_lds() or ins.is_vmem():
            t = max(t, last_m + 8)
            if prev_valu:
                t += 8
            t += 4
            prev_valu = False
        elif k == "nop":
            t += 4 * (ins.n + 1)
        else:
            t += 4
    return t, nm


def emit(nodes):
    out = []
    for ins in flatten(nodes):
        out += ins.lines()
    return out


class Gap:
    def __init__(self, mfma):
        self.mfma = mfma
        self.sc = []
        self.vec = []
        self.valu = []

    def used(self):
        return len(self.vec) + sum(c for _, c in self.valu)

    def fits(self, cost):
        u = self.used() + cost
        return u <= 2 and u + len(self.sc) <= 3

    def fits_sc(self):
        return len(self.sc) + 1 + self.used() <= 3
```

```python
import sys, struct, math
from asmlib import *

NAME = "concat_heads__mha_block_cached__gqa_block_cached__near_ridge"
OPT = dict(nsum_mfma=None, kv_flags="", stamp=False)

PIECE = 1056
SLOT = 16 * PIECE
GRP = 4 * SLOT
XBASE = 5 * SLOT
XBUF = 38912
FLAG_LDS = XBASE + 2 * XBUF
LDS1 = 163840
WS_O = 0
WS_QS = 41943040
WS_WOT = 83886080
WS_SIZE = 290193408

S_W, S_HEAD = 42, 43
SX, SWQ, SK, SV, SO, SQS, SWO, SWOT = 44, 48, 52, 56, 60, 64, 68, 72
S_KVOFF, S_LDSW, S_DELTA, S_CNT, S_XB = 76, 77, 78, 79, 80
S_T16 = 80
S_TMP = 86
S_FLAG = 87
S_C = 88
S_HOFF = 90
S_THR = 91
S_W4224 = 92
S_TMP2 = 93
S_MSK = 94
S_MSK2 = 96
V_KVD, V_L16, V_K, V_V, V_W, V_WQD, V_XD, V_XR, V_WOD = 1, 2, 3, 4, 5, 6, 7, 9, 11
VQ, VK, VS, VP, VNM = 16, 96, 160, 192, 208
AV, AL, AONE = 160, 224, 244


def srd(b):
    return "s[%d:%d]" % (b, b + 3)


def r4(f, b):
    return "%s[%d:%d]" % (f, b, b + 3)


def r2(f, b):
    return "%s[%d:%d]" % (f, b, b + 1)


def mfma(d, a, b, c=None):
    return Ins("v_mfma_f32_16x16x32_bf16 %s, %s, %s, %s" % (d, a, b, d if c is None else c))


def I(t, **k):
    return Ins(t, **k)


def fbits(x):
    return struct.unpack("<I", struct.pack("<f", x))[0]


def make_srd(base, ptr, off_lo_sgpr, size, off_hi=None):
    return [I("s_add_u32 s%d, s%d, %s" % (base, ptr, off_lo_sgpr)),
            I("s_addc_u32 s%d, s%d, 0" % (base + 1, ptr + 1)),
            I("s_mov_b32 s%d, %s" % (base + 2, size)),
            I("s_mov_b32 s%d, 0x20000" % (base + 3))]


def gaps_to_nodes(gaps):
    out = []
    for g in gaps:
        if g.mfma is not None:
            out.append(g.mfma)
        out += g.sc
        out += g.vec
        out += [x for x, _ in g.valu]
    return out


def k1_setup():
    p = []
    p += [I("s_cmp_ge_u32 s2, 256"), I("s_cbranch_scc1 L1_exit"),
          I("s_load_dwordx16 s[16:31], s[0:1], 0"),
          I("s_load_dwordx8 s[32:39], s[0:1], 64"),
          I("s_load_dwordx2 s[40:41], s[0:1], 96")]
    p += [I("s_and_b32 s3, s2, 7"), I("s_lshr_b32 s4, s2, 3"),
          I("s_lshr_b32 s5, s3, 2"),
          I("s_lshr_b32 s6, s3, 1"), I("s_and_b32 s6, s6, 1"), I("s_lshl_b32 s6, s6, 2"),
          I("s_lshr_b32 s7, s4, 3"), I("s_add_u32 s6, s6, s7"),
          I("s_and_b32 s7, s3, 1"), I("s_lshl_b32 s7, s7, 3"),
          I("s_and_b32 s8, s4, 7"), I("s_add_u32 s7, s7, s8"),
          I("v_lshrrev_b32 v12, 6, v0"), I("v_and_b32 v0, 63, v0"),
          I("v_readfirstlane_b32 s%d, v12" % S_W)]
    p += [I("v_lshlrev_b32 v%d, 4, v0" % V_L16),
          I("v_lshlrev_b32 v13, 12, v12"), I("v_add_u32 v%d, v13, v%d" % (V_KVD, V_L16)),
          I("v_and_b32 v13, 15, v0"), I("v_mul_u32_u24 v13, %d, v13" % PIECE),
          I("v_lshrrev_b32 v14, 4, v0"), I("v_lshlrev_b32 v15, 4, v14"),
          I("v_add3_u32 v%d, v13, v15, v%d" % (V_K, V_K)),
          ]
    p.pop()
    p += [I("v_add_u32 v%d, v13, v15" % V_K), I("v_add_u32 v%d, %d, v%d" % (V_K, GRP, V_K)),
          I("v_lshrrev_b32 v13, 2, v0"), I("v_mul_u32_u24 v13, %d, v13" % PIECE),
          I("v_and_b32 v15, 3, v0"), I("v_lshlrev_b32 v15, 3, v15"),
          I("v_add_u32 v%d, v13, v15" % V_V), I("v_add_u32 v%d, v%d, v15" % (V_W, V_V)),
          I("v_add_u32 v%d, %d, v%d" % (V_V, GRP, V_V)),
          I("v_lshlrev_b32 v13, 2, v12"), I("v_add_u32 v13, v13, v14"), I("v_lshlrev_b32 v13, 15, v13"),
          I("v_and_b32 v15, 15, v0"), I("v_lshlrev_b32 v15, 4, v15"),
          I("v_add_u32 v%d, v13, v15" % V_WQD),
          I("v_lshlrev_b32 v13, 2, v14"), I("v_add_u32 v13, v13, v12"), I("v_lshlrev_b32 v13, 12, v13"),
          I("v_add_u32 v%d, v13, v15" % V_WOD)]

    def fswz(dst, src, t1):
        return [I("v_and_b32 v%d, 1, v%d" % (dst, src)), I("v_lshlrev_b32 v%d, 1, v%d" % (dst, dst)),
                I("v_and_b32 v%d, 4, v%d" % (t1, src)), I("v_or_b32 v%d, v%d, v%d" % (dst, dst, t1)),
                I("v_lshrrev_b32 v%d, 1, v%d" % (t1, src)), I("v_xor_b32 v%d, v%d, v%d" % (t1, t1, src)),
                I("v_lshrrev_b32 v%d, 1, v%d" % (t1, t1)), I("v_and_b32 v%d, 1, v%d" % (t1, t1)),
                I("v_or_b32 v%d, v%d, v%d" % (dst, dst, t1))]
    for pi in range(2):
        p += [I("v_add_u32 v16, %d, v14" % (4 * pi))]
        p += fswz(17, 16, 18)
        p += [I("v_and_b32 v18, 7, v0"), I("v_xor_b32 v17, v17, v18"), I("v_lshlrev_b32 v17, 4, v17"),
              I("v_lshrrev_b32 v18, 3, v0"), I("v_mul_u32_u24 v19, 80, v12"), I("v_add_u32 v18, v18, v19"),
              I("v_add_u32 v18, %d, v18" % (8 * pi)), I("v_lshlrev_b32 v18, 10, v18"),
              I("v_add_u32 v%d, v17, v18" % (V_XD + pi))]
    p += [I("v_and_b32 v19, 15, v0"), I("v_lshrrev_b32 v16, 1, v19")]
    p += fswz(17, 16, 18)
    p += [I("v_lshlrev_b32 v18, 1, v14"), I("v_xor_b32 v17, v17, v18"), I("v_lshlrev_b32 v17, 4, v17"),
          I("v_lshlrev_b32 v19, 7, v19"), I("v_mul_u32_u24 v18, 10240, v12"),
          I("v_add3_u32 v19, v19, v18, v17"), I("v_add_u32 v%d, %d, v19" % (V_XR, XBASE)),
          I("v_xor_b32 v%d, 16, v%d" % (V_XR + 1, V_XR))]
    p += [I("s_waitcnt lgkmcnt(0)")]
    p += [I("s_cmp_eq_u32 s5, 0")]
    for a, b in ((16, 26), (18, 28), (20, 30), (22, 32), (24, 34)):
        p += [I("s_cselect_b64 s[%d:%d], s[%d:%d], s[%d:%d]" % (a, a + 1, a, a + 1, b, b + 1))]
    p += [I("s_mul_i32 s8, s6, 311296")] + make_srd(SX, 16, "s8", 311296)
    p += [I("s_lshl_b32 s8, s7, 9"), I("s_sub_u32 s9, %d, s8" % (512 * 8192))] + make_srd(SWQ, 22, "s8", "s9")
    p += [I("s_lshl_b32 s8, s6, 4"), I("s_add_u32 s10, s8, s7"), I("s_lshl_b32 s8, s10, 19")]
    p += make_srd(SK, 18, "s8", 524288) + make_srd(SV, 20, "s8", 524288)
    p += [I("s_lshl_b32 s8, s5, 3"), I("s_add_u32 s8, s8, s6"), I("s_lshl_b32 s8, s8, 2"),
          I("s_add_u32 s8, s8, s%d" % S_W), I("s_mul_i32 s8, s8, 655360"),
          I("s_mul_i32 s9, s7, 40960"), I("s_add_u32 s8, s8, s9")] + make_srd(SO, 40, "s8", 40960)
    p += [I("s_lshl_b32 s8, s2, 2"), I("s_add_u32 s8, s8, s%d" % S_W), I("s_mul_i32 s8, s8, 40960"),
          I("s_add_u32 s8, s8, %d" % WS_QS)] + make_srd(SQS, 40, "s8", 40960)
    p += [I("s_lshr_b32 s8, s10, 1"), I("s_lshl_b32 s9, s8, 16"), I("s_and_b32 s11, s10, 1"),
          I("s_lshl_b32 s12, s11, 9"), I("s_add_u32 s9, s9, s12"), I("s_sub_u32 s12, 65536, s12")]
    p += make_srd(SWO, 24, "s9", "s12")
    p += [I("s_lshl_b32 s9, s5, 2"), I("s_lshl_b32 s11, s11, 1"), I("s_add_u32 s9, s9, s11"),
          I("s_lshr_b32 s11, s%d, 1" % S_W), I("s_add_u32 s9, s9, s11"), I("s_lshl_b32 s9, s9, 7"),
          I("s_lshl_b32 s8, s8, 1"), I("s_add_u32 s9, s9, s8"), I("s_and_b32 s11, s%d, 1" % S_W),
          I("s_add_u32 s9, s9, s11"), I("s_lshl_b32 s9, s9, 13"), I("s_add_u32 s9, s9, %d" % WS_WOT)]
    p += make_srd(SWOT, 40, "s9", 8192)
    c = math.log2(math.e) / math.sqrt(128.0)
    p += [I("s_mul_i32 s%d, s%d, 4224" % (S_W4224, S_W)),
          I("s_add_u32 s%d, s%d, %d" % (S_LDSW, S_W4224, GRP)),
          I("s_mov_b32 s%d, %d" % (S_DELTA, (-GRP) & 0xffffffff)),
          I("s_mul_i32 s%d, s%d, 10240" % (S_XB, S_W)), I("s_add_u32 s%d, s%d, %d" % (S_XB, S_XB, XBASE)),
          I("s_mov_b32 s%d, 0x%x" % (S_C, fbits(c))), I("s_mov_b32 s%d, 0x%x" % (S_C + 1, fbits(c))),
          I("s_mov_b32 s%d, 0" % S_FLAG), I("s_mov_b32 s%d, 0" % S_HEAD), I("s_mov_b32 s%d, 0" % S_HOFF),
          I("s_mov_b32 s%d, 0x%x" % (S_THR, fbits(2.0 ** 32))),
          I("s_mov_b32 s%d, %d" % (S_KVOFF, 4 * 16384))]
    for t in range(1, 5):
        p += [I("s_mov_b32 s%d, %d" % (S_T16 + t, t * 16384))]
    p += [I("s_cmp_eq_u32 s%d, 3" % S_W), I("s_cbranch_scc1 L1_path4")]
    return p


def x_dma(NT, kap):
    out = []
    for t in range(NT):
        for pi in range(2):
            dst = (kap & 1) * XBUF + t * 2048 + pi * 1024 - kap * 128
            so = "0" if t == 0 else "s%d" % (S_T16 + t)
            out.append(([I("s_add_u32 m0, s%d, %d" % (S_XB, dst & 0xffffffff))],
                        I("buffer_load_dwordx4 v%d, %s, %s offen offset:%d lds" % (V_XD + pi, srd(SX), so, kap * 128),
                          tag=("x", kap))))
    return out


def qstep_info(s):
    return (1 - (s & 1)), s >> 1


def wq_dma(s):
    hh, kap = qstep_info(s)
    out = []
    for r in range(4):
        out.append(([I("s_add_u32 m0, s%d, %d" % (S_W4224, (s & 3) * SLOT + r * PIECE)),
                     I("s_mov_b32 s%d, %d" % (S_TMP, (64 * kap + r) * 8192 + hh * 256))],
                    I("buffer_load_dwordx4 v%d, %s, s%d offen lds" % (V_WQD, srd(SWQ), S_TMP), tag=("wq", s))))
    return out


def kv_slot(blk, isv):
    return (GRP if (blk & 2) == 0 else 0) + ((blk & 1) * 2 + isv) * SLOT


def kv_dma_abs(blk, isv):
    out = []
    for pc in range(4):
        sc = [I("s_add_u32 m0, s%d, %d" % (S_W4224, kv_slot(blk, isv) + pc * 32))]
        if pc == 0:
            sc.append(I("s_mov_b32 s%d, %d" % (S_TMP2, blk * 16384)))
        out.append((sc, I("buffer_load_dwordx4 v%d, %s, s%d offen offset:%d %slds" % (
            V_KVD, srd(SV if isv else SK), S_TMP2, pc * 1024, OPT["kv_flags"]), tag=("kv", blk))))
    return out


def qacc(NT, hh, t, n):
    if hh == 1:
        return ("a", (t * 8 + n) * 4)
    if t < 3:
        return ("a", 160 + (t * 8 + n) * 4)
    return ("v", 160 + ((t - 3) * 8 + n) * 4)


def xfrag(kap, t, e):
    return VQ + (kap & 1) * 40 + (t * 2 + e) * 4


def wqfrag(n, e):
    return 224 + (n & 3) * 8 + e * 4


def wq_reads(s, n):
    out = []
    for e in range(2):
        for i in range(2):
            T = 2 * e + i
            off = (s & 3) * SLOT + T * 256 + (n >> 1) * 64 + (n & 1) * 8
            out.append(I("ds_read_b64_tr_b16 %s, v%d offset:%d" % (r2("v", wqfrag(n, e) + 2 * i), V_W, off)))
    return out


def x_reads(NT, kap):
    return [I("ds_read_b128 %s, v%d offset:%d" % (r4("v", xfrag(kap, t, e)), V_XR + e, (kap & 1) * XBUF + t * 2048))
            for t in range(NT) for e in range(2)]


def conv_tile_pair(srcs, tmp, dst, mul):
    out = []
    for k, (f, b) in enumerate(srcs):
        if f == "a":
            for r in range(4):
                out.append(I("v_accvgpr_read_b32 v%d, a%d" % (tmp + 4 * k + r, b + r)))
            src = tmp + 4 * k
        else:
            src = b
        for h in range(2):
            out.append(I("v_pk_mul_f32 %s, %s, %s" % (r2("v", tmp + 4 * k + 2 * h), r2("v", src + 2 * h), mul)))
    for j in range(4):
        out.append(I("v_cvt_pk_bf16_f32 v%d, v%d, v%d" % (dst + j, tmp + 2 * j, tmp + 2 * j + 1)))
    return out


def frag_io(kind, reg, srdb, idx, base_sgpr, state, **k):
    out = []
    hi = idx // 4
    if state.get("hi") != hi:
        state["hi"] = hi
        if base_sgpr is None:
            out.append(I("s_mov_b32 s%d, %d" % (S_TMP, hi * 4096)))
        else:
            out.append(I("s_add_u32 s%d, s%d, %d" % (S_TMP, base_sgpr, hi * 4096)))
    out.append(I("buffer_%s_dwordx4 %s, v%d, %s, s%d offen offset:%d" % (
        kind, reg, V_L16, srd(srdb), S_TMP, (idx % 4) * 1024), **k))
    return out


def place_dma(gaps, g, item):
    sc, d = item
    k = g - 1
    for s in reversed(sc):
        while not gaps[k].fits_sc():
            k -= 1
        assert not any(v.kind == "dma" for gg in gaps[k:g] for v in gg.vec), "scalar set-up crosses a DMA"
        gaps[k].sc.insert(0, s)
        k -= 0
    assert gaps[g].fits(1)
    gaps[g].vec.append(d)


def qproj(NT):
    p = []
    for item in x_dma(NT, 0) + wq_dma(0) + wq_dma(1) + x_dma(NT, 1) + wq_dma(2) + wq_dma(3) + kv_dma_abs(0, 0):
        p += item[0] + [item[1]]
    for hh in range(2):
        for t in range(NT):
            for n in range(8):
                f, b = qacc(NT, hh, t, n)
                for r in range(4):
                    p.append(I(("v_accvgpr_write_b32 a%d, 0" if f == "a" else "v_mov_b32 v%d, 0") % (b + r)))
    p.append(I("", waittag=[("x", 0)]))
    p += x_reads(NT, 0)
    p.append(I("s_barrier", waittag=[("wq", 0), ("lds_all", 0)]))
    p += wq_reads(0, 0) + wq_reads(0, 1)
    for item in x_dma(NT, 2):
        p += item[0] + [item[1]]
    B = 2 * NT
    G = 8 * B
    gaps = []
    for s in range(16):
        hh, kap = qstep_info(s)
        for n in range(8):
            for t in range(NT):
                for e in range(2):
                    f, b = qacc(NT, hh, t, n)
                    gaps.append(Gap(mfma(r4(f, b), r4("v", wqfrag(n, e)), r4("v", xfrag(kap, t, e)))))
    for s in range(16):
        g0 = s * G
        hh, kap = qstep_info(s)
        for n in range(8):
            s2, n2 = (s, n + 2) if n < 6 else (s + 1, n - 6)
            if s2 < 16:
                rd = wq_reads(s2, n2)
                gaps[g0 + n * B + 1].vec += rd[:2]
                gaps[g0 + n * B + 2].vec += rd[2:]
        wt = [("lds_all", 0)] + ([("wq", s + 1)] if s < 15 else [("kv", 0)])
        gaps[g0 + 6 * B].sc.append(I("s_barrier", waittag=wt))
        gaps[g0 + 6 * B].sc.append(I(""))
        gaps[g0 + 6 * B].sc.append(I(""))
        if s % 2 == 0 and kap + 1 < 8:
            rd = x_reads(NT, kap + 1)
            gaps[g0 + 3].sc.append(I("", waittag=[("x", kap + 1)]))
            pos = [g0 + n * B + o for n in range(0, 5) for o in (4, 5)]
            for k in range(0, len(rd), 2):
                gaps[pos[k // 2]].vec += rd[k:k + 2]
        if s + 4 < 16:
            items = wq_dma(s + 4)
        else:
            items = kv_dma_abs(2 + ((s - 12) >> 1), (s - 12) & 1)
        pos = [g0 + 6 * B + 4, g0 + 6 * B + 7, g0 + 7 * B + 4, g0 + 7 * B + 7]
        for it, g in zip(items, pos):
            place_dma(gaps, g, it)
        if s % 2 == 1:
            items = []
            if kap + 3 < 8:
                items = x_dma(NT, kap + 3)
            elif s == 11:
                items = kv_dma_abs(0, 1) + kv_dma_abs(1, 0)
            elif s == 13:
                items = kv_dma_abs(1, 1)
            pos = [g0 + n * B + o for n in range(0, 5) for o in (4, 7)]
            for it, g in zip(items, pos):
                place_dma(gaps, g, it)
            assert len(items) <= len(pos)
    work = []
    st = {}
    for t in range(NT):
        for s4 in range(4):
            k = t * 4 + s4
            tmp = 96 + (k % 4) * 12
            work += conv_tile_pair([qacc(NT, 1, t, 2 * s4), qacc(NT, 1, t, 2 * s4 + 1)], tmp, tmp + 8, "s[%d:%d]" % (S_C, S_C + 1))
            work += frag_io("store", r4("v", tmp + 8), SQS, 20 + k, None, st, tag=("qs", 0))
    g = 15 * G + 4
    rest = []
    for w in work:
        if rest:
            rest.append(w)
            continue
        if w.kind == "salu" or w.is_vmem():
            g += 1
        while g < len(gaps) and not (gaps[g].fits_sc() if w.kind == "salu" else gaps[g].fits(1)):
            g += 1
        if g >= len(gaps):
            rest.append(w)
        elif w.kind == "salu":
            gaps[g].sc.append(w)
        elif w.is_vmem():
            gaps[g].vec.append(w)
        else:
            gaps[g].valu.append((w, 1))
    p += gaps_to_nodes(gaps) + rest
    for t in range(NT):
        for s4 in range(4):
            k = t * 4 + s4
            tmp = 224 + (k % 4) * 8
            p += conv_tile_pair([qacc(NT, 0, t, 2 * s4), qacc(NT, 0, t, 2 * s4 + 1)], tmp, VQ + k * 4, "s[%d:%d]" % (S_C, S_C + 1))
    p += [I("v_and_b32 v12, 3, v0"), I("v_cmp_eq_u32 vcc, 0, v12"), I("v_mov_b32 v13, 0x3f803f80"),
          I("v_cndmask_b32 v12, 0, v13, vcc")]
    p += [I("v_accvgpr_write_b32 a%d, v12" % (AONE + r)) for r in range(4)]
    p += [k_read(0, T, s4) for T in range(4) for s4 in range(4)]
    return p


def k_read(blk, T, s4):
    return I("ds_read_b128 %s, v%d offset:%d" % (r4("v", VK + (T * 4 + s4) * 4), V_K, (blk & 1) * 2 * SLOT + T * 256 + s4 * 64))


def v_read(blk, n, e, i):
    return I("ds_read_b64_tr_b16 %s, v%d offset:%d" % (
        r2("a", AV + (n * 2 + e) * 4 + 2 * i), V_V, ((blk & 1) * 2 + 1) * SLOT + (2 * e + i) * 256 + n * 32))


def cross_lane_max_to_negm(NT, src, tmp):
    p = []
    for mn in ("v_permlane32_swap_b32", "v_permlane16_swap_b32"):
        p += [I("v_mov_b32 v%d, v%d" % (tmp + t, src + t)) for t in range(NT)]
        p += [I("%s v%d, v%d" % (mn, src + t, tmp + t)) for t in range(NT)]
        p += [I("v_max_f32 v%d, v%d, v%d" % (src + t, src + t, tmp + t)) for t in range(NT)]
    for t in range(NT):
        p += [I("v_sub_f32 v%d, 0, v%d" % (VNM + t * 4 + r, src + t)) for r in range(4)]
    return p


def initial_max(NT):
    p = []
    for t in range(NT):
        for s4 in range(4):
            p.append(mfma(r4("v", VS + t * 4), r4("v", VK + s4 * 4), r4("v", VQ + (t * 4 + s4) * 4), "0" if s4 == 0 else None))
    for t in range(NT):
        b = VS + t * 4
        p.append(I("v_max3_f32 v%d, v%d, v%d, v%d" % (228 + t, b, b + 1, b + 2)))
    for t in range(NT):
        p.append(I("v_max_f32 v%d, v%d, v%d" % (228 + t, 228 + t, VS + t * 4 + 3)))
    p += cross_lane_max_to_negm(NT, 228, 236)
    return p


class Pattern:
    def __init__(self, NT):
        self.NT = NT
        par = lambda tau, t: (NT * tau + t) & 1
        self.par = par
        S = lambda tau, t, T: VS + par(tau, t) * 16 + T * 4
        P = lambda tau, t, e: VP + par(tau, t) * 8 + e * 4
        self.m = []
        qk_pos, pv_pos = {}, {}
        for t in range(NT):
            qk_pos[t] = len(self.m)
            for T in range(4):
                for s4 in range(4):
                    self.m.append((lambda tau, t=t, T=T, s4=s4: mfma(
                        r4("v", S(tau, t, T)), r4("v", VK + (T * 4 + s4) * 4), r4("v", VQ + (t * 4 + s4) * 4),
                        r4("v", VNM + t * 4) if s4 == 0 else None), 0))
            tp = (t - 1) % NT
            wrap = 1 if t == 0 else 0
            pv_pos[tp] = len(self.m)
            for n in range(8):
                for e in range(2):
                    self.m.append((lambda tau, tp=tp, n=n, e=e: mfma(
                        r4("a", (tp * 8 + n) * 4), r4("a", AV + (n * 2 + e) * 4), r4("v", P(tau, tp, e)),
                        "0" if (tau == 0 and e == 0) else None), wrap))
            for e in range(2):
                self.m.append((lambda tau, tp=tp, e=e: mfma(
                    r4("a", AL + tp * 4), r4("a", AONE), r4("v", P(tau, tp, e)),
                    "0" if (tau == 0 and e == 0) else None), wrap))
        G = self.G = len(self.m)
        self.gaps = [Gap(None) for _ in range(G)]
        pvabs = lambda t: pv_pos[t] + (G if t == NT - 1 else 0)

        def put(cls, fn, g, cost=1):
            gp = self.gaps[g % G]
            ent = (fn, g // G)
            if cls == "sc":
                gp.sc.append(ent)
            elif cls == "vec":
                gp.vec.append(ent)
            else:
                gp.valu.append((ent, cost))

        def first_fit(g, cost):
            while not self.gaps[g % G].fits(cost):
                g += 1
            return g
        v0 = pv_pos[NT - 1]
        vdead = pv_pos[0]
        for i in range(16):
            n, e = i >> 1, i & 1
            g = v0 + 1 + (i * 5) // 2
            assert g >= v0 + i and g <= vdead + i - 8
            for h in range(2):
                put("vec", lambda tau, n=n, e=e, h=h: v_read(tau, n, e, h), g)
        bar = vdead + 18
        put("sc", lambda tau: I("s_barrier", waittag=[("kv", tau + 1)]), bar)
        put("sc", lambda tau: I(""), bar)
        g = bar + 2
        for isv in range(2):
            for pc in range(4):
                put("sc", lambda tau, isv=isv, pc=pc: I("s_add_u32 m0, s%d, %d" % (
                    S_LDSW, ((tau & 1) * 2 + isv) * SLOT + pc * 32)), g - 1)
                put("vec", lambda tau, isv=isv, pc=pc: I(
                    "buffer_load_dwordx4 v%d, %s, s%d offen offset:%d %slds" % (
                        V_KVD, srd(SV if isv else SK), S_KVOFF, pc * 1024, OPT["kv_flags"]), tag=("kv", tau + 4)), g)
                g += 3
        put("sc", lambda tau: I("s_add_u32 s%d, s%d, 16384" % (S_KVOFF, S_KVOFF)), g - 1)
        odd = lambda txt: (lambda tau: I(txt) if tau & 1 else None)
        put("valu", odd("v_add_u32 v%d, s%d, v%d" % (V_K, S_DELTA, V_K)), g - 3)
        put("valu", odd("v_add_u32 v%d, s%d, v%d" % (V_V, S_DELTA, V_V)), g - 6)
        put("sc", odd("s_add_u32 s%d, s%d, s%d" % (S_LDSW, S_LDSW, S_DELTA)), g)
        put("sc", odd("s_sub_u32 s%d, 0, s%d" % (S_DELTA, S_DELTA)), g + 1)
        assert g + 1 < qk_pos[NT - 1]
        k0 = qk_pos[NT - 1]
        for i in range(0, 16, 2):
            g = k0 + 2 + 2 * i
            assert g <= G + i - 8
            for h in range(2):
                put("vec", lambda tau, i=i + h: k_read(tau + 1, i >> 2, i & 3), g)
        for t in range(NT):
            for T in range(4):
                rel = qk_pos[t] + 4 * T + 3 + 8
                for h in range(2):
                    gl = rel
                    for r in (2 * h, 2 * h + 1):
                        g = first_fit(rel, 2)
                        put("valu", lambda tau, t=t, T=T, r=r: I("v_exp_f32 v%d, v%d" % (S(tau, t, T) + r, S(tau, t, T) + r)), g, 2)
                        gl = max(gl, g)
                    cand = [g for g in range(gl + 1, gl + 6) if self.gaps[g % G].used() == 1 and self.gaps[g % G].fits(1)
                            and g <= pvabs(t) - 2]
                    g = cand[0] if cand else first_fit(gl + 1, 1)
                    assert g <= pvabs(t) - 2, ("softmax misses its deadline", t, T, g, pvabs(t))
                    put("valu", lambda tau, t=t, T=T, h=h: I("v_cvt_pk_bf16_f32 v%d, v%d, v%d" % (
                        P(tau, t, T >> 1) + (T & 1) * 2 + h, S(tau, t, T) + 2 * h, S(tau, t, T) + 2 * h + 1)), g)

    def inst(self, tau, lo=0, hi=15):
        out = []

        def add(ent):
            fn, wrap = ent
            tt = tau - wrap
            if lo <= tt <= hi:
                x = fn(tt)
                if x is not None:
                    out.append(x)
        for m, gp in zip(self.m, self.gaps):
            add(m)
            for e in gp.sc:
                add(e)
            for e in gp.vec:
                add(e)
            for e, _ in gp.valu:
                add(e)
        return out


def o_epilogue(NT, have_rl=True):
    p = []
    st = {}
    for u in range(4):
        for t in range(NT):
            k = u * NT + t
            tmp = VS + (k % 4) * 12
            p += conv_tile_pair([("a", (t * 8 + 2 * u) * 4), ("a", (t * 8 + 2 * u + 1) * 4)], tmp, tmp + 8,
                                "%s op_sel_hi:[1,0]" % r2("v", 228 + 2 * t))
            p += frag_io("store", r4("v", tmp + 8), SO, u * 5 + t, S_HOFF, st)
    return p


def q_load(NT, base_sgpr, idx0):
    p = []
    st = {}
    for k in range(NT * 4):
        p += frag_io("load", r4("v", VQ + k * 4), SQS, idx0 + k, base_sgpr, st)
    return p


def slow_path(NT, L):
    full = lambda: [I("s_waitcnt vmcnt(0) lgkmcnt(0)")]

    def dma(isv):
        out = []
        for pc in range(4):
            out += [I("s_add_u32 m0, s%d, %d" % (S_W4224, GRP + isv * SLOT + pc * 32)),
                    I("buffer_load_dwordx4 v%d, %s, s%d offen offset:%d lds" % (V_KVD, srd(SV if isv else SK), S_KVOFF, pc * 1024))]
        return out
    qk = lambda t, T, s4, c: mfma(r4("v", VS + T * 4), r4("v", VK + (T * 4 + s4) * 4), r4("v", VQ + (t * 4 + s4) * 4), c if s4 == 0 else None)
    p = [I("%s_slow:" % L)] + full()
    p += [I("s_mov_b32 s%d, 0" % S_HEAD)]
    p += [I("%s_slow_head:" % L),
          I("s_lshr_b32 s3, s98, s%d" % S_HEAD), I("s_and_b32 s3, s3, 1"), I("s_cmp_eq_u32 s3, 0"),
          I("s_cbranch_scc1 %s_slow_next" % L),
          I("s_mul_i32 s%d, s%d, 20480" % (S_HOFF, S_HEAD))]
    p += q_load(NT, S_HOFF, 0)
    p += [I("v_mov_b32 v%d, 0xff800000" % (228 + t)) for t in range(NT)]
    p += [I("s_lshl_b32 s%d, s%d, 18" % (S_KVOFF, S_HEAD)), I("s_mov_b32 s%d, 16" % S_CNT)] + full()
    b = [I("%s_slow_l1:" % L), I("s_barrier")] + dma(0) + full() + [I("s_barrier")]
    b += [k_read(0, T, s4) for T in range(4) for s4 in range(4)]
    for t in range(NT):
        b += [qk(t, T, s4, "0") for T in range(4) for s4 in range(4)]
        b += [I("v_max_f32 v%d, v%d, v%d" % (228 + t, 228 + t, VS + r)) for r in range(16)]
    b += full() + [I("s_add_u32 s%d, s%d, 16384" % (S_KVOFF, S_KVOFF)), I("s_sub_u32 s%d, s%d, 1" % (S_CNT, S_CNT)),
                   I("s_cmp_lg_u32 s%d, 0" % S_CNT), I("s_cbranch_scc1 %s_slow_l1" % L)]
    p.append(Loop("sl1", b, 2))
    p += cross_lane_max_to_negm(NT, 228, 236)
    p += [I("v_accvgpr_write_b32 a%d, 0" % r) for r in list(range(NT * 32)) + list(range(AL, AL + NT * 4))]
    p += [I("s_lshl_b32 s%d, s%d, 18" % (S_KVOFF, S_HEAD)), I("s_mov_b32 s%d, 16" % S_CNT)]
    b = [I("%s_slow_l2:" % L), I("s_barrier")] + dma(0) + dma(1) + full() + [I("s_barrier")]
    b += [k_read(0, T, s4) for T in range(4) for s4 in range(4)]
    b += [v_read(0, n, e, h) for n in range(8) for e in range(2) for h in range(2)]
    for t in range(NT):
        b += [qk(t, T, s4, r4("v", VNM + t * 4)) for T in range(4) for s4 in range(4)]
        b += [I("v_exp_f32 v%d, v%d" % (VS + r, VS + r)) for r in range(16)]
        b += [I("v_cvt_pk_bf16_f32 v%d, v%d, v%d" % (VP + j, VS + 2 * j, VS + 2 * j + 1)) for j in range(8)]
        for n in range(8):
            for e in range(2):
                b.append(mfma(r4("a", (t * 8 + n) * 4), r4("a", AV + (n * 2 + e) * 4), r4("v", VP + e * 4)))
        for e in range(2):
            b.append(mfma(r4("a", AL + t * 4), r4("a", AONE), r4("v", VP + e * 4)))
    b += full() + [I("s_add_u32 s%d, s%d, 16384" % (S_KVOFF, S_KVOFF)), I("s_sub_u32 s%d, s%d, 1" % (S_CNT, S_CNT)),
                   I("s_cmp_lg_u32 s%d, 0" % S_CNT), I("s_cbranch_scc1 %s_slow_l2" % L)]
    p.append(Loop("sl2", b, 2))
    p += [I("s_lshr_b32 s3, s%d, s%d" % (S_FLAG, S_HEAD)), I("s_and_b32 s3, s3, 1"), I("s_cmp_eq_u32 s3, 0"),
          I("s_cbranch_scc1 %s_slow_next" % L), I("s_nop 7")]
    p += [I("v_accvgpr_read_b32 v%d, a%d" % (228 + 2 * t, AL + 4 * t)) for t in range(NT)]
    p += [I("v_rcp_f32 v%d, v%d" % (228 + 2 * t, 228 + 2 * t)) for t in range(NT)]
    p += o_epilogue(NT)
    p += [I("%s_slow_next:" % L)] + full() + [I("s_nop 7"),
          I("s_add_u32 s%d, s%d, 1" % (S_HEAD, S_HEAD)), I("s_cmp_lt_u32 s%d, 2" % S_HEAD),
          I("s_cbranch_scc1 %s_slow_head" % L), I("s_endpgm")]
    return p


def k1_path(NT):
    L = "L%d" % (10 + NT)
    p = qproj(NT)
    pat = Pattern(NT)
    h = [I("%s_head:" % L)]
    h += initial_max(NT)
    h += pat.inst(0) + pat.inst(1)
    h += [I("s_mov_b32 s%d, 7" % S_CNT)]
    body = [I("%s_loop:" % L)] + pat.inst(2) + pat.inst(3)
    body += [I("s_sub_u32 s%d, s%d, 1" % (S_CNT, S_CNT)), I("s_cmp_lg_u32 s%d, 0" % S_CNT), I("s_cbranch_scc1 %s_loop" % L)]
    h.append(Loop("blk", body, 7, {"kv": 2}))
    h += pat.inst(16)
    h += [I("v_accvgpr_read_b32 v%d, a%d" % (228 + 2 * t, AL + 4 * t)) for t in range(NT)]
    for t in range(NT):
        d = S_MSK if t == 0 else S_MSK2
        h.append(I("v_cmp_ngt_f32 s[%d:%d], s%d, v%d" % (d, d + 1, S_THR, 228 + 2 * t)))
        if t:
            h.append(I("s_or_b64 s[%d:%d], s[%d:%d], s[%d:%d]" % (S_MSK, S_MSK + 1, S_MSK, S_MSK + 1, d, d + 1)))
    h += [I("v_rcp_f32 v%d, v%d" % (228 + 2 * t, 228 + 2 * t)) for t in range(NT)]
    h += [I("s_cmp_eq_u64 s[%d:%d], 0" % (S_MSK, S_MSK + 1)), I("s_cbranch_scc1 %s_ok" % L)]
    rare = [I("s_lshl_b32 s3, 1, s%d" % S_HEAD), I("s_or_b32 s%d, s%d, s3" % (S_FLAG, S_FLAG))]
    st = {}
    for k in range(NT * 4):
        rare += frag_io("store", r4("v", VQ + k * 4), SQS, k, S_HOFF, st)
    rare += [I("s_waitcnt vmcnt(0) lgkmcnt(0)"), I("s_nop 7")]
    h.append(Cond(rare))
    h += [I("%s_ok:" % L), I("s_cmp_lg_u32 s%d, 0" % S_HEAD), I("s_cbranch_scc1 %s_last" % L)]
    h.append(Cond([I("", waittag=[("qs", 0)])] + q_load(NT, None, 20) + [I("s_branch %s_epi" % L)], "head", [0]))
    wo = [I("%s_last:" % L), I("s_waitcnt vmcnt(0)")]
    for sl in range(2):
        for pc in range(4):
            wo += [I("s_add_u32 m0, s%d, %d" % (S_W4224, sl * SLOT + pc * 32 - sl * 256 + 0)),
                   I("buffer_load_dwordx4 v%d, %s, 0 offen offset:%d lds" % (V_WOD, srd(SWO), pc * 1024 + sl * 256), tag=("wo", 0))]
    h.append(Cond(wo, "head", [1]))
    h += [I("%s_epi:" % L)]
    h += o_epilogue(NT)
    h += [I("s_add_u32 s%d, s%d, 20480" % (S_HOFF, S_HOFF)), I("s_add_u32 s%d, s%d, 1" % (S_HEAD, S_HEAD)),
          I("s_cmp_lt_u32 s%d, 2" % S_HEAD), I("s_cbranch_scc1 %s_head" % L)]
    p.append(Loop("head", h, 2, {"kv": 16}))
    p += [I("v_mov_b32 v12, %d" % FLAG_LDS), I("s_lshl_b32 s3, s%d, 2" % S_W), I("v_add_u32 v13, s3, v12"),
          I("v_mov_b32 v14, s%d" % S_FLAG), I("ds_write_b32 v13, v14")]
    p += [I("s_barrier", waittag=[("wo", 0), ("lds_all", 0)])]
    p += [I("ds_read_b128 v[12:15], v12")]
    p += [I("s_lshr_b32 s3, s%d, 1" % S_W), I("s_mul_i32 s3, s3, %d" % SLOT), I("s_and_b32 s4, s%d, 1" % S_W),
          I("s_lshl_b32 s4, s4, 9"), I("s_add_u32 s3, s3, s4"), I("v_add_u32 v%d, s3, v%d" % (V_W, V_W))]
    for nt in range(8):
        for i in range(2):
            p.append(I("ds_read_b64_tr_b16 %s, v%d offset:%d" % (r2("v", VS + nt * 4 + 2 * i), V_W, i * 256 + (nt >> 1) * 64 + (nt & 1) * 8)))
    st = {}
    for nt in range(8):
        p += frag_io("store", r4("v", VS + nt * 4), SWOT, nt, None, st)
    p += [I("v_or_b32 v12, v12, v13"), I("v_or_b32 v14, v14, v15"), I("v_or_b32 v12, v12, v14"),
          I("v_readfirstlane_b32 s98, v12"), I("s_cmp_lg_u32 s98, 0"), I("s_cbranch_scc1 %s_slow" % L), I("s_endpgm")]
    p.append(Cond(slow_path(NT, L)))
    return p, pat


def k2_setup():
    p = [I("s_cmp_ge_u32 s2, 256"), I("s_cbranch_scc1 L2_exit"),
         I("s_load_dwordx2 s[16:17], s[0:1], 80"), I("s_load_dwordx2 s[18:19], s[0:1], 96")]
    p += [I("s_and_b32 s3, s2, 7"), I("s_lshr_b32 s4, s2, 3"), I("s_lshr_b32 s5, s3, 2"),
          I("s_and_b32 s6, s3, 3"), I("s_lshl_b32 s6, s6, 1"), I("s_lshr_b32 s7, s4, 4"), I("s_add_u32 s6, s6, s7"),
          I("s_lshr_b32 s7, s4, 2"), I("s_and_b32 s7, s7, 3"), I("s_and_b32 s8, s4, 3"),
          I("v_lshrrev_b32 v12, 6, v0"), I("v_and_b32 v0, 63, v0"), I("v_readfirstlane_b32 s%d, v12" % S_W),
          I("v_lshlrev_b32 v%d, 4, v0" % V_L16)]
    for vq in range(4):
        p += [I("v_add_u32 v13, %d, v12" % vq), I("v_and_b32 v13, 3, v13"), I("v_lshlrev_b32 v14, 11, v13"),
              I("v_add_u32 v%d, v14, v%d" % (4 + vq, V_L16))]
        p += [I("v_mul_u32_u24 v14, 30720, v13"), I("v_add_u32 v%d, v14, v%d" % (11 if vq == 0 else 7 + vq, V_L16))]
    p += [I("v_and_b32 v13, 15, v0"), I("v_lshlrev_b32 v13, 11, v13"), I("v_lshrrev_b32 v14, 4, v0"),
          I("v_lshlrev_b32 v14, 4, v14"), I("v_lshlrev_b32 v15, 6, v12"), I("v_add3_u32 v3, v13, v14, v15")]
    p += [I("s_waitcnt lgkmcnt(0)")]
    p += [I("s_lshl_b32 s9, s5, 3"), I("s_add_u32 s9, s9, s6"), I("s_lshl_b32 s9, s9, 2"), I("s_add_u32 s9, s9, s7"),
          I("s_mul_i32 s9, s9, 655360"), I("s_mul_i32 s10, s%d, 163840" % S_W), I("s_add_u32 s9, s9, s10")]
    p += make_srd(SO, 18, "s9", 163840)
    p += [I("s_lshl_b32 s9, s5, 2"), I("s_add_u32 s9, s9, s8"), I("s_lshl_b32 s9, s9, 20"),
          I("s_lshl_b32 s10, s%d, 18" % S_W), I("s_add_u32 s9, s9, s10"), I("s_add_u32 s9, s9, %d" % WS_WOT)]
    p += make_srd(SWOT, 18, "s9", 262144)
    p += [I("s_mul_i32 s9, s6, 304"), I("s_mul_i32 s10, s7, 80"), I("s_add_u32 s9, s9, s10"), I("s_lshl_b32 s9, s9, 11"),
          I("s_lshl_b32 s10, s5, 10"), I("s_add_u32 s9, s9, s10"), I("s_lshl_b32 s10, s8, 8"), I("s_add_u32 s9, s9, s10"),
          I("s_sub_u32 s10, %d, s9" % (8 * 304 * 2048))]
    p += make_srd(SX, 16, "s9", "s10")
    p += [I("s_cmp_eq_u32 s7, 3"), I("s_cbranch_scc1 L2_path4")]
    return p


def k2_path(NT):
    quads = [("v", b) for b in range(16, 256, 4)] + [("a", b) for b in range(160, 256, 4)]
    per = 2 * NT + 16

    def freg(sg, kind, e, idx):
        k = (sg % 3) * per + (e * NT + idx if kind == "o" else 2 * NT + e * 8 + idx)
        return r4(*quads[k])

    def loads(sg):
        order = [("w", 0, 0), ("o", 0, 0), ("w", 1, 0), ("o", 1, 0)]
        for t in range(1, NT):
            order += [("o", 0, t), ("o", 1, t)]
        for nt in range(1, 8):
            order += [("w", 0, nt), ("w", 1, nt)]
        out = []
        for kind, e, idx in order:
            ks = 2 * sg + e
            if kind == "o":
                off = (ks * 5 + idx) * 1024
                out.append((I("s_mov_b32 s%d, %d" % (S_TMP, off & ~4095)),
                            I("buffer_load_dwordx4 %s, v%d, %s, s%d offen offset:%d" % (freg(sg, kind, e, idx), V_L16, srd(SO), S_TMP, off & 4095))))
            else:
                out.append((I("s_mov_b32 s%d, %d" % (S_TMP, ks * 8192)),
                            I("buffer_load_dwordx4 %s, v%d, %s, s%d offen offset:%d" % (freg(sg, kind, e, idx), 4 + (idx >> 1), srd(SWOT), S_TMP, (idx & 1) * 1024))))
        return out
    p = []
    for sg in range(2):
        for s, l in loads(sg):
            p += [s, l]
    for sg in range(16):
        gaps = []
        for nt in range(8):
            for t in range(NT):
                for e in range(2):
                    gaps.append(Gap(mfma(r4("a", (t * 8 + nt) * 4), freg(sg, "w", e, nt), freg(sg, "o", e, t),
                                         "0" if (sg == 0 and e == 0) else None)))
        if sg + 2 < 16:
            ld = loads(sg + 2)
            for k, (s, l) in enumerate(ld):
                g = (k * len(gaps)) // len(ld)
                gaps[g].sc.append(s)
                gaps[g].vec.append(l)
        p += gaps_to_nodes(gaps)
    for vq in range(1, 4):
        for t in range(NT):
            for e in range(2):
                p.append(I("ds_write_b128 v%d, %s offset:%d" % (7 + vq, r4("a", (t * 8 + 2 * vq + e) * 4), (vq - 1) * 10240 + (t * 2 + e) * 1024)))
    for t in range(NT):
        for r in range(8):
            p.append(I("v_accvgpr_read_b32 v%d, a%d" % (16 + t * 8 + r, t * 32 + r)))
    p += [I("s_barrier", waittag=[("lds_all", 0)])]
    for t in range(NT):
        for k in range(3):
            for e in range(2):
                p.append(I("ds_read_b128 %s, v11 offset:%d" % (r4("v", 64 + (t * 3 + k) * 8 + e * 4), k * 10240 + (t * 2 + e) * 1024)))
    for t in range(NT):
        for k in range(3):
            for r in range(0, 8, 2):
                p.append(I("v_pk_add_f32 %s, %s, %s" % (r2("v", 16 + t * 8 + r), r2("v", 16 + t * 8 + r), r2("v", 64 + (t * 3 + k) * 8 + r))))
        for j in range(4):
            p.append(I("v_cvt_pk_bf16_f32 v%d, v%d, v%d" % (192 + t * 4 + j, 16 + t * 8 + 2 * j, 16 + t * 8 + 2 * j + 1)))
        p += [I("s_mov_b32 s%d, %d" % (S_TMP, t * 32768)),
              I("buffer_store_dwordx4 %s, v3, %s, s%d offen" % (r4("v", 192 + t * 4), srd(SX), S_TMP))]
    p += [I("s_endpgm")]
    return p


def finish(nodes, name, verbose):
    insert_waits(nodes)
    rep = []
    insert_nops(nodes, rep)
    cyc, nm = estimate_cycles(nodes)
    if verbose:
        print("%s: est %d cycles, %d mfma (%.2f/mfma), %d nop sites" % (name, cyc, nm, cyc / max(nm, 1), len(rep)), file=sys.stderr)
        if verbose > 1:
            for r in rep:
                print("   nop", r, file=sys.stderr)
    return emit(nodes)


def descriptor(name):
    return """.amdhsa_kernel %s
  .amdhsa_next_free_vgpr 512
  .amdhsa_next_free_sgpr 102
  .amdhsa_accum_offset 256
  .amdhsa_group_segment_fixed_size 0
  .amdhsa_kernarg_size 104
  .amdhsa_user_sgpr_count 2
  .amdhsa_user_sgpr_kernarg_segment_ptr 1
  .amdhsa_system_sgpr_workgroup_id_x 1
.end_amdhsa_kernel""" % name


def build(verbose=1):
    out = []
    out.append("; @launch kernel=attn_kernel grid=(256,1,1) block=(256,1,1) lds=%d" % LDS1)
    out.append("; @launch kernel=oproj_kernel grid=(256,1,1) block=(256,1,1) lds=122880")
    out.append('.amdgcn_target "amdgcn-amd-amdhsa--gfx950"')
    out.append(".text")
    for kname, setup, path, lab in (("attn_kernel", k1_setup, lambda nt: k1_path(nt)[0], "L1"), ("oproj_kernel", k2_setup, k2_path, "L2")):
        out += [".globl %s" % kname, ".p2align 8", ".type %s,@function" % kname, "%s:" % kname]
        st = setup()
        p5 = path(5)
        lines = finish(st + p5, kname + "/5", verbose)
        out += lines
        st2 = setup()
        p4 = path(4)
        finish(st2 + p4, kname + "/4", verbose)
        out += [".p2align 6", "%s_path4:" % lab, "    s_nop 4"] + emit(p4)
        out += ["%s_exit:" % lab, "    s_endpgm"]
    out += ['.section .rodata,"a"']
    for kname in ("attn_kernel", "oproj_kernel"):
        out += [".p2align 6", descriptor(kname)]
    return "\n".join(out) + "\n"


if __name__ == "__main__":
    dst = sys.argv[1] if len(sys.argv) > 1 else "cdna_kernels/%s.s" % NAME
    for a in sys.argv[2:]:
        k, v = a.split("=")
        OPT[k] = eval(v)
    open(dst, "w").write(build(verbose=1))
```

```python
import sys, struct, math
from asmlib import *

NAME = "concat_heads__mha_block_cached__gqa_block_cached__near_ridge"
OPT = dict(nsum_mfma=None, kv_flags="", stamp=False)

PIECE = 1056
SLOT = 16 * PIECE
GRP = 4 * SLOT
XBASE = 5 * SLOT
XBUF = 38912
FLAG_LDS = XBASE + 2 * XBUF
LDS1 = 163840
WS_O = 0
WS_QS = 41943040
WS_WOT = 83886080
WS_SIZE = 290193408

S_W, S_HEAD = 42, 43
SX, SWQ, SK, SV, SO, SQS, SWO, SWOT = 44, 48, 52, 56, 60, 64, 68, 72
S_KVOFF, S_LDSW, S_DELTA, S_CNT, S_XB = 76, 77, 78, 79, 80
S_T16 = 80
S_TMP = 86
S_FLAG = 87
S_C = 88
S_HOFF = 90
S_THR = 91
S_W4224 = 92
S_TMP2 = 93
S_MSK = 94
S_MSK2 = 96
V_KVD, V_L16, V_K, V_V, V_W, V_WQD, V_XD, V_XR, V_WOD = 1, 2, 3, 4, 5, 6, 7, 9, 11
VQ, VK, VS, VP, VNM = 16, 96, 160, 192, 208
AV, AL, AONE = 160, 224, 244


def srd(b):
    return "s[%d:%d]" % (b, b + 3)


def r4(f, b):
    return "%s[%d:%d]" % (f, b, b + 3)


def r2(f, b):
    return "%s[%d:%d]" % (f, b, b + 1)


def mfma(d, a, b, c=None):
    return Ins("v_mfma_f32_16x16x32_bf16 %s, %s, %s, %s" % (d, a, b, d if c is None else c))


def I(t, **k):
    return Ins(t, **k)


def fbits(x):
    return struct.unpack("<I", struct.pack("<f", x))[0]


def make_srd(base, ptr, off_lo_sgpr, size, off_hi=None):
    return [I("s_add_u32 s%d, s%d, %s" % (base, ptr, off_lo_sgpr)),
            I("s_addc_u32 s%d, s%d, 0" % (base + 1, ptr + 1)),
            I("s_mov_b32 s%d, %s" % (base + 2, size)),
            I("s_mov_b32 s%d, 0x20000" % (base + 3))]


def stamp_setup(wsptr, second):
    if not OPT["stamp"]:
        return []
    return [I("s_lshl_b32 s99, s2, 2"), I("s_add_u32 s99, s99, s%d" % S_W), I("s_lshl_b32 s99, s99, 8"),
            I("s_add_u32 s99, s99, %d" % ((100 << 20) + 128 * second))] + make_srd(36, wsptr, "s99", 128) + [I("s_mov_b32 s99, 0")]


def stamp():
    if not OPT["stamp"]:
        return []
    return [I("s_memtime s[100:101]"), I("s_memrealtime s[34:35]"), I("s_waitcnt lgkmcnt(0)"),
            I("v_mov_b32 v14, s100"), I("v_mov_b32 v15, s34"),
            I("buffer_store_dwordx2 v[14:15], off, s[36:39], s99"), I("s_add_u32 s99, s99, 8")]


def gaps_to_nodes(gaps):
    out = []
    for g in gaps:
        if g.mfma is not None:
            out.append(g.mfma)
        out += g.sc
        out += g.vec
        out += [x for x, _ in g.valu]
    return out


def k1_setup():
    p = []
    p += [I("s_cmp_ge_u32 s2, 256"), I("s_cbranch_scc1 L1_exit"),
          I("s_load_dwordx16 s[16:31], s[0:1], 0"),
          I("s_load_dwordx8 s[32:39], s[0:1], 64"),
          I("s_load_dwordx2 s[40:41], s[0:1], 96")]
    p += [I("s_and_b32 s3, s2, 7"), I("s_lshr_b32 s4, s2, 3"),
          I("s_lshr_b32 s5, s3, 2"),
          I("s_lshr_b32 s6, s3, 1"), I("s_and_b32 s6, s6, 1"), I("s_lshl_b32 s6, s6, 2"),
          I("s_lshr_b32 s7, s4, 3"), I("s_add_u32 s6, s6, s7"),
          I("s_and_b32 s7, s3, 1"), I("s_lshl_b32 s7, s7, 3"),
          I("s_and_b32 s8, s4, 7"), I("s_add_u32 s7, s7, s8"),
          I("v_lshrrev_b32 v12, 6, v0"), I("v_and_b32 v0, 63, v0"),
          I("v_readfirstlane_b32 s%d, v12" % S_W)]
    p += [I("v_lshlrev_b32 v%d, 4, v0" % V_L16),
          I("v_lshlrev_b32 v13, 12, v12"), I("v_add_u32 v%d, v13, v%d" % (V_KVD, V_L16)),
          I("v_and_b32 v13, 15, v0"), I("v_mul_u32_u24 v13, %d, v13" % PIECE),
          I("v_lshrrev_b32 v14, 4, v0"), I("v_lshlrev_b32 v15, 4, v14"),
          I("v_add3_u32 v%d, v13, v15, v%d" % (V_K, V_K)),
          ]
    p.pop()
    p += [I("v_add_u32 v%d, v13, v15" % V_K), I("v_add_u32 v%d, %d, v%d" % (V_K, GRP, V_K)),
          I("v_lshrrev_b32 v13, 2, v0"), I("v_mul_u32_u24 v13, %d, v13" % PIECE),
          I("v_and_b32 v15, 3, v0"), I("v_lshlrev_b32 v15, 3, v15"),
          I("v_add_u32 v%d, v13, v15" % V_V), I("v_add_u32 v%d, v%d, v15" % (V_W, V_V)),
          I("v_add_u32 v%d, %d, v%d" % (V_V, GRP, V_V)),
          I("v_lshlrev_b32 v13, 2, v12"), I("v_add_u32 v13, v13, v14"), I("v_lshlrev_b32 v13, 15, v13"),
          I("v_and_b32 v15, 15, v0"), I("v_lshlrev_b32 v15, 4, v15"),
          I("v_add_u32 v%d, v13, v15" % V_WQD),
          I("v_lshlrev_b32 v13, 2, v14"), I("v_add_u32 v13, v13, v12"), I("v_lshlrev_b32 v13, 12, v13"),
          I("v_add_u32 v%d, v13, v15" % V_WOD)]

    def fswz(dst, src, t1):
        return [I("v_and_b32 v%d, 1, v%d" % (dst, src)), I("v_lshlrev_b32 v%d, 1, v%d" % (dst, dst)),
                I("v_and_b32 v%d, 4, v%d" % (t1, src)), I("v_or_b32 v%d, v%d, v%d" % (dst, dst, t1)),
                I("v_lshrrev_b32 v%d, 1, v%d" % (t1, src)), I("v_xor_b32 v%d, v%d, v%d" % (t1, t1, src)),
                I("v_lshrrev_b32 v%d, 1, v%d" % (t1, t1)), I("v_and_b32 v%d, 1, v%d" % (t1, t1)),
                I("v_or_b32 v%d, v%d, v%d" % (dst, dst, t1))]
    for pi in range(2):
        p += [I("v_add_u32 v16, %d, v14" % (4 * pi))]
        p += fswz(17, 16, 18)
        p += [I("v_and_b32 v18, 7, v0"), I("v_xor_b32 v17, v17, v18"), I("v_lshlrev_b32 v17, 4, v17"),
              I("v_lshrrev_b32 v18, 3, v0"), I("v_mul_u32_u24 v19, 80, v12"), I("v_add_u32 v18, v18, v19"),
              I("v_add_u32 v18, %d, v18" % (8 * pi)), I("v_lshlrev_b32 v18, 10, v18"),
              I("v_add_u32 v%d, v17, v18" % (V_XD + pi))]
    p += [I("v_and_b32 v19, 15, v0"), I("v_lshrrev_b32 v16, 1, v19")]
    p += fswz(17, 16, 18)
    p += [I("v_lshlrev_b32 v18, 1, v14"), I("v_xor_b32 v17, v17, v18"), I("v_lshlrev_b32 v17, 4, v17"),
          I("v_lshlrev_b32 v19, 7, v19"), I("v_mul_u32_u24 v18, 10240, v12"),
          I("v_add3_u32 v19, v19, v18, v17"), I("v_add_u32 v%d, %d, v19" % (V_XR, XBASE)),
          I("v_xor_b32 v%d, 16, v%d" % (V_XR + 1, V_XR))]
    p += [I("s_waitcnt lgkmcnt(0)")]
    p += [I("s_cmp_eq_u32 s5, 0")]
    for a, b in ((16, 26), (18, 28), (20, 30), (22, 32), (24, 34)):
        p += [I("s_cselect_b64 s[%d:%d], s[%d:%d], s[%d:%d]" % (a, a + 1, a, a + 1, b, b + 1))]
    p += [I("s_mul_i32 s8, s6, 311296")] + make_srd(SX, 16, "s8", 311296)
    p += [I("s_lshl_b32 s8, s7, 9"), I("s_sub_u32 s9, %d, s8" % (512 * 8192))] + make_srd(SWQ, 22, "s8", "s9")
    p += [I("s_lshl_b32 s8, s6, 4"), I("s_add_u32 s10, s8, s7"), I("s_lshl_b32 s8, s10, 19")]
    p += make_srd(SK, 18, "s8", 524288) + make_srd(SV, 20, "s8", 524288)
    p += [I("s_lshl_b32 s8, s5, 3"), I("s_add_u32 s8, s8, s6"), I("s_lshl_b32 s8, s8, 2"),
          I("s_add_u32 s8, s8, s%d" % S_W), I("s_mul_i32 s8, s8, 655360"),
          I("s_mul_i32 s9, s7, 40960"), I("s_add_u32 s8, s8, s9")] + make_srd(SO, 40, "s8", 40960)
    p += [I("s_lshl_b32 s8, s2, 2"), I("s_add_u32 s8, s8, s%d" % S_W), I("s_mul_i32 s8, s8, 40960"),
          I("s_add_u32 s8, s8, %d" % WS_QS)] + make_srd(SQS, 40, "s8", 40960)
    p += [I("s_lshr_b32 s8, s10, 1"), I("s_lshl_b32 s9, s8, 16"), I("s_and_b32 s11, s10, 1"),
          I("s_lshl_b32 s12, s11, 9"), I("s_add_u32 s9, s9, s12"), I("s_sub_u32 s12, 65536, s12")]
    p += make_srd(SWO, 24, "s9", "s12")
    p += [I("s_lshl_b32 s9, s5, 2"), I("s_lshl_b32 s11, s11, 1"), I("s_add_u32 s9, s9, s11"),
          I("s_lshr_b32 s11, s%d, 1" % S_W), I("s_add_u32 s9, s9, s11"), I("s_lshl_b32 s9, s9, 7"),
          I("s_lshl_b32 s8, s8, 1"), I("s_add_u32 s9, s9, s8"), I("s_and_b32 s11, s%d, 1" % S_W),
          I("s_add_u32 s9, s9, s11"), I("s_lshl_b32 s9, s9, 13"), I("s_add_u32 s9, s9, %d" % WS_WOT)]
    p += make_srd(SWOT, 40, "s9", 8192)
    c = math.log2(math.e) / math.sqrt(128.0)
    p += [I("s_mul_i32 s%d, s%d, 4224" % (S_W4224, S_W)),
          I("s_add_u32 s%d, s%d, %d" % (S_LDSW, S_W4224, GRP)),
          I("s_mov_b32 s%d, %d" % (S_DELTA, (-GRP) & 0xffffffff)),
          I("s_mul_i32 s%d, s%d, 10240" % (S_XB, S_W)), I("s_add_u32 s%d, s%d, %d" % (S_XB, S_XB, XBASE)),
          I("s_mov_b32 s%d, 0x%x" % (S_C, fbits(c))), I("s_mov_b32 s%d, 0x%x" % (S_C + 1, fbits(c))),
          I("s_mov_b32 s%d, 0" % S_FLAG), I("s_mov_b32 s%d, 0" % S_HEAD), I("s_mov_b32 s%d, 0" % S_HOFF),
          I("s_mov_b32 s%d, 0x%x" % (S_THR, fbits(2.0 ** 32))),
          I("s_mov_b32 s%d, %d" % (S_KVOFF, 4 * 16384))]
    for t in range(1, 5):
        p += [I("s_mov_b32 s%d, %d" % (S_T16 + t, t * 16384))]
    p += stamp_setup(40, 0) + stamp()
    p += [I("s_cmp_eq_u32 s%d, 3" % S_W), I("s_cbranch_scc1 L1_path4")]
    return p


def x_dma(NT, kap):
    out = []
    for t in range(NT):
        for pi in range(2):
            dst = (kap & 1) * XBUF + t * 2048 + pi * 1024 - kap * 128
            so = "0" if t == 0 else "s%d" % (S_T16 + t)
            out.append(([I("s_add_u32 m0, s%d, %d" % (S_XB, dst & 0xffffffff))],
                        I("buffer_load_dwordx4 v%d, %s, %s offen offset:%d lds" % (V_XD + pi, srd(SX), so, kap * 128),
                          tag=("x", kap))))
    return out


def qstep_info(s):
    return (1 - (s & 1)), s >> 1


def wq_dma(s):
    hh, kap = qstep_info(s)
    out = []
    for r in range(4):
        out.append(([I("s_add_u32 m0, s%d, %d" % (S_W4224, (s & 3) * SLOT + r * PIECE)),
                     I("s_mov_b32 s%d, %d" % (S_TMP, (64 * kap + r) * 8192 + hh * 256))],
                    I("buffer_load_dwordx4 v%d, %s, s%d offen lds" % (V_WQD, srd(SWQ), S_TMP), tag=("wq", s))))
    return out


def kv_slot(blk, isv):
    return (GRP if (blk & 2) == 0 else 0) + ((blk & 1) * 2 + isv) * SLOT


def kv_dma_abs(blk, isv):
    out = []
    for pc in range(4):
        sc = [I("s_add_u32 m0, s%d, %d" % (S_W4224, kv_slot(blk, isv) + pc * 32))]
        if pc == 0:
            sc.append(I("s_mov_b32 s%d, %d" % (S_TMP2, blk * 16384)))
        out.append((sc, I("buffer_load_dwordx4 v%d, %s, s%d offen offset:%d %slds" % (
            V_KVD, srd(SV if isv else SK), S_TMP2, pc * 1024, OPT["kv_flags"]), tag=("kv", blk))))
    return out


def qacc(NT, hh, t, n):
    if hh == 1:
        return ("a", (t * 8 + n) * 4)
    if t < 3:
        return ("a", 160 + (t * 8 + n) * 4)
    return ("v", 160 + ((t - 3) * 8 + n) * 4)


def xfrag(kap, t, e):
    return VQ + (kap & 1) * 40 + (t * 2 + e) * 4


def wqfrag(n, e):
    return 224 + (n & 3) * 8 + e * 4


def wq_reads(s, n):
    out = []
    for e in range(2):
        for i in range(2):
            T = 2 * e + i
            off = (s & 3) * SLOT + T * 256 + (n >> 1) * 64 + (n & 1) * 8
            out.append(I("ds_read_b64_tr_b16 %s, v%d offset:%d" % (r2("v", wqfrag(n, e) + 2 * i), V_W, off)))
    return out


def x_reads(NT, kap):
    return [I("ds_read_b128 %s, v%d offset:%d" % (r4("v", xfrag(kap, t, e)), V_XR + e, (kap & 1) * XBUF + t * 2048))
            for t in range(NT) for e in range(2)]


def conv_tile_pair(srcs, tmp, dst, mul):
    out = []
    for k, (f, b) in enumerate(srcs):
        if f == "a":
            for r in range(4):
                out.append(I("v_accvgpr_read_b32 v%d, a%d" % (tmp + 4 * k + r, b + r)))
            src = tmp + 4 * k
        else:
            src = b
        for h in range(2):
            out.append(I("v_pk_mul_f32 %s, %s, %s" % (r2("v", tmp + 4 * k + 2 * h), r2("v", src + 2 * h), mul)))
    for j in range(4):
        out.append(I("v_cvt_pk_bf16_f32 v%d, v%d, v%d" % (dst + j, tmp + 2 * j, tmp + 2 * j + 1)))
    return out


def frag_io(kind, reg, srdb, idx, base_sgpr, state, **k):
    out = []
    hi = idx // 4
    if state.get("hi") != hi:
        state["hi"] = hi
        if base_sgpr is None:
            out.append(I("s_mov_b32 s%d, %d" % (S_TMP, hi * 4096)))
        else:
            out.append(I("s_add_u32 s%d, s%d, %d" % (S_TMP, base_sgpr, hi * 4096)))
    out.append(I("buffer_%s_dwordx4 %s, v%d, %s, s%d offen offset:%d" % (
        kind, reg, V_L16, srd(srdb), S_TMP, (idx % 4) * 1024), **k))
    return out


def place_dma(gaps, g, item):
    sc, d = item
    k = g - 1
    for s in reversed(sc):
        while not gaps[k].fits_sc():
            k -= 1
        assert not any(v.kind == "dma" for gg in gaps[k:g] for v in gg.vec), "scalar set-up crosses a DMA"
        gaps[k].sc.insert(0, s)
        k -= 0
    assert gaps[g].fits(1)
    gaps[g].vec.append(d)


def qproj(NT):
    p = []
    for item in x_dma(NT, 0) + wq_dma(0) + wq_dma(1) + x_dma(NT, 1) + wq_dma(2) + wq_dma(3) + kv_dma_abs(0, 0):
        p += item[0] + [item[1]]
    for hh in range(2):
        for t in range(NT):
            for n in range(8):
                f, b = qacc(NT, hh, t, n)
                for r in range(4):
                    p.append(I(("v_accvgpr_write_b32 a%d, 0" if f == "a" else "v_mov_b32 v%d, 0") % (b + r)))
    p.append(I("", waittag=[("x", 0)]))
    p += x_reads(NT, 0)
    p.append(I("s_barrier", waittag=[("wq", 0), ("lds_all", 0)]))
    p += stamp()
    p += wq_reads(0, 0) + wq_reads(0, 1)
    for item in x_dma(NT, 2):
        p += item[0] + [item[1]]
    B = 2 * NT
    G = 8 * B
    gaps = []
    for s in range(16):
        hh, kap = qstep_info(s)
        for n in range(8):
            for t in range(NT):
                for e in range(2):
                    f, b = qacc(NT, hh, t, n)
                    gaps.append(Gap(mfma(r4(f, b), r4("v", wqfrag(n, e)), r4("v", xfrag(kap, t, e)))))
    for s in range(16):
        g0 = s * G
        hh, kap = qstep_info(s)
        for n in range(8):
            s2, n2 = (s, n + 2) if n < 6 else (s + 1, n - 6)
            if s2 < 16:
                rd = wq_reads(s2, n2)
                gaps[g0 + n * B + 1].vec += rd[:2]
                gaps[g0 + n * B + 2].vec += rd[2:]
        wt = [("lds_all", 0)] + ([("wq", s + 1)] if s < 15 else [("kv", 0)])
        gaps[g0 + 6 * B].sc.append(I("s_barrier", waittag=wt))
        gaps[g0 + 6 * B].sc.append(I(""))
        gaps[g0 + 6 * B].sc.append(I(""))
        if s % 2 == 0 and kap + 1 < 8:
            rd = x_reads(NT, kap + 1)
            gaps[g0 + 3].sc.append(I("", waittag=[("x", kap + 1)]))
            pos = [g0 + n * B + o for n in range(0, 5) for o in (4, 5)]
            for k in range(0, len(rd), 2):
                gaps[pos[k // 2]].vec += rd[k:k + 2]
        if s + 4 < 16:
            items = wq_dma(s + 4)
        else:
            items = kv_dma_abs(2 + ((s - 12) >> 1), (s - 12) & 1)
        pos = [g0 + 6 * B + 4, g0 + 6 * B + 7, g0 + 7 * B + 4, g0 + 7 * B + 7]
        for it, g in zip(items, pos):
            place_dma(gaps, g, it)
        if s % 2 == 1:
            items = []
            if kap + 3 < 8:
                items = x_dma(NT, kap + 3)
            elif s == 11:
                items = kv_dma_abs(0, 1) + kv_dma_abs(1, 0)
            elif s == 13:
                items = kv_dma_abs(1, 1)
            pos = [g0 + n * B + o for n in range(0, 5) for o in (4, 7)]
            for it, g in zip(items, pos):
                place_dma(gaps, g, it)
            assert len(items) <= len(pos)
    work = []
    st = {}
    for t in range(NT):
        for s4 in range(4):
            k = t * 4 + s4
            tmp = 96 + (k % 4) * 12
            work += conv_tile_pair([qacc(NT, 1, t, 2 * s4), qacc(NT, 1, t, 2 * s4 + 1)], tmp, tmp + 8, "s[%d:%d]" % (S_C, S_C + 1))
            work += frag_io("store", r4("v", tmp + 8), SQS, 20 + k, None, st, tag=("qs", 0))
    g = 15 * G + 4
    rest = []
    for w in work:
        if rest:
            rest.append(w)
            continue
        if w.kind == "salu" or w.is_vmem():
            g += 1
        while g < len(gaps) and not (gaps[g].fits_sc() if w.kind == "salu" else gaps[g].fits(1)):
            g += 1
        if g >= len(gaps):
            rest.append(w)
        elif w.kind == "salu":
            gaps[g].sc.append(w)
        elif w.is_vmem():
            gaps[g].vec.append(w)
        else:
            gaps[g].valu.append((w, 1))
    p += gaps_to_nodes(gaps) + stamp() + rest
    for t in range(NT):
        for s4 in range(4):
            k = t * 4 + s4
            tmp = 224 + (k % 4) * 8
            p += conv_tile_pair([qacc(NT, 0, t, 2 * s4), qacc(NT, 0, t, 2 * s4 + 1)], tmp, VQ + k * 4, "s[%d:%d]" % (S_C, S_C + 1))
    p += [I("v_and_b32 v12, 3, v0"), I("v_cmp_eq_u32 vcc, 0, v12"), I("v_mov_b32 v13, 0x3f803f80"),
          I("v_cndmask_b32 v12, 0, v13, vcc")]
    p += [I("v_accvgpr_write_b32 a%d, v12" % (AONE + r)) for r in range(4)]
    p += [k_read(0, T, s4) for T in range(4) for s4 in range(4)]
    return p


def k_read(blk, T, s4):
    return I("ds_read_b128 %s, v%d offset:%d" % (r4("v", VK + (T * 4 + s4) * 4), V_K, (blk & 1) * 2 * SLOT + T * 256 + s4 * 64))


def v_read(blk, n, e, i):
    return I("ds_read_b64_tr_b16 %s, v%d offset:%d" % (
        r2("a", AV + (n * 2 + e) * 4 + 2 * i), V_V, ((blk & 1) * 2 + 1) * SLOT + (2 * e + i) * 256 + n * 32))


def cross_lane_max_to_negm(NT, src, tmp):
    p = []
    for mn in ("v_permlane32_swap_b32", "v_permlane16_swap_b32"):
        p += [I("v_mov_b32 v%d, v%d" % (tmp + t, src + t)) for t in range(NT)]
        p += [I("%s v%d, v%d" % (mn, src + t, tmp + t)) for t in range(NT)]
        p += [I("v_max_f32 v%d, v%d, v%d" % (src + t, src + t, tmp + t)) for t in range(NT)]
    for t in range(NT):
        p += [I("v_sub_f32 v%d, 0, v%d" % (VNM + t * 4 + r, src + t)) for r in range(4)]
    return p


def initial_max(NT):
    p = []
    for t in range(NT):
        for s4 in range(4):
            p.append(mfma(r4("v", VS + t * 4), r4("v", VK + s4 * 4), r4("v", VQ + (t * 4 + s4) * 4), "0" if s4 == 0 else None))
    for t in range(NT):
        b = VS + t * 4
        p.append(I("v_max3_f32 v%d, v%d, v%d, v%d" % (228 + t, b, b + 1, b + 2)))
    for t in range(NT):
        p.append(I("v_max_f32 v%d, v%d, v%d" % (228 + t, 228 + t, VS + t * 4 + 3)))
    p += cross_lane_max_to_negm(NT, 228, 236)
    return p


class Pattern:
    def __init__(self, NT):
        self.NT = NT
        par = lambda tau, t: (NT * tau + t) & 1
        self.par = par
        S = lambda tau, t, T: VS + par(tau, t) * 16 + T * 4
        P = lambda tau, t, e: VP + par(tau, t) * 8 + e * 4
        self.m = []
        qk_pos, pv_pos = {}, {}
        for t in range(NT):
            qk_pos[t] = len(self.m)
            for T in range(4):
                for s4 in range(4):
                    self.m.append((lambda tau, t=t, T=T, s4=s4: mfma(
                        r4("v", S(tau, t, T)), r4("v", VK + (T * 4 + s4) * 4), r4("v", VQ + (t * 4 + s4) * 4),
                        r4("v", VNM + t * 4) if s4 == 0 else None), 0))
            tp = (t - 1) % NT
            wrap = 1 if t == 0 else 0
            pv_pos[tp] = len(self.m)
            for n in range(8):
                for e in range(2):
                    self.m.append((lambda tau, tp=tp, n=n, e=e: mfma(
                        r4("a", (tp * 8 + n) * 4), r4("a", AV + (n * 2 + e) * 4), r4("v", P(tau, tp, e)),
                        "0" if (tau == 0 and e == 0) else None), wrap))
            for e in range(2):
                self.m.append((lambda tau, tp=tp, e=e: mfma(
                    r4("a", AL + tp * 4), r4("a", AONE), r4("v", P(tau, tp, e)),
                    "0" if (tau == 0 and e == 0) else None), wrap))
        G = self.G = len(self.m)
        self.gaps = [Gap(None) for _ in range(G)]
        pvabs = lambda t: pv_pos[t] + (G if t == NT - 1 else 0)

        def put(cls, fn, g, cost=1):
            gp = self.gaps[g % G]
            ent = (fn, g // G)
            if cls == "sc":
                gp.sc.append(ent)
            elif cls == "vec":
                gp.vec.append(ent)
            else:
                gp.valu.append((ent, cost))

        def first_fit(g, cost):
            while not self.gaps[g % G].fits(cost):
                g += 1
            return g
        v0 = pv_pos[NT - 1]
        vdead = pv_pos[0]
        for i in range(16):
            n, e = i >> 1, i & 1
            g = v0 + 1 + (i * 5) // 2
            assert g >= v0 + i and g <= vdead + i - 8
            for h in range(2):
                put("vec", lambda tau, n=n, e=e, h=h: v_read(tau, n, e, h), g)
        bar = vdead + 18
        put("sc", lambda tau: I("s_barrier", waittag=[("kv", tau + 1)]), bar)
        put("sc", lambda tau: I(""), bar)
        g = bar + 2
        for isv in range(2):
            for pc in range(4):
                put("sc", lambda tau, isv=isv, pc=pc: I("s_add_u32 m0, s%d, %d" % (
                    S_LDSW, ((tau & 1) * 2 + isv) * SLOT + pc * 32)), g - 1)
                put("vec", lambda tau, isv=isv, pc=pc: I(
                    "buffer_load_dwordx4 v%d, %s, s%d offen offset:%d %slds" % (
                        V_KVD, srd(SV if isv else SK), S_KVOFF, pc * 1024, OPT["kv_flags"]), tag=("kv", tau + 4)), g)
                g += 3
        put("sc", lambda tau: I("s_add_u32 s%d, s%d, 16384" % (S_KVOFF, S_KVOFF)), g - 1)
        odd = lambda txt: (lambda tau: I(txt) if tau & 1 else None)
        put("valu", odd("v_add_u32 v%d, s%d, v%d" % (V_K, S_DELTA, V_K)), g - 3)
        put("valu", odd("v_add_u32 v%d, s%d, v%d" % (V_V, S_DELTA, V_V)), g - 6)
        put("sc", odd("s_add_u32 s%d, s%d, s%d" % (S_LDSW, S_LDSW, S_DELTA)), g)
        put("sc", odd("s_sub_u32 s%d, 0, s%d" % (S_DELTA, S_DELTA)), g + 1)
        assert g + 1 < qk_pos[NT - 1]
        k0 = qk_pos[NT - 1]
        for i in range(0, 16, 2):
            g = k0 + 2 + 2 * i
            assert g <= G + i - 8
            for h in range(2):
                put("vec", lambda tau, i=i + h: k_read(tau + 1, i >> 2, i & 3), g)
        for t in range(NT):
            for T in range(4):
                rel = qk_pos[t] + 4 * T + 3 + 8
                for h in range(2):
                    gl = rel
                    for r in (2 * h, 2 * h + 1):
                        g = first_fit(rel, 2)
                        put("valu", lambda tau, t=t, T=T, r=r: I("v_exp_f32 v%d, v%d" % (S(tau, t, T) + r, S(tau, t, T) + r)), g, 2)
                        gl = max(gl, g)
                    cand = [g for g in range(gl + 1, gl + 6) if self.gaps[g % G].used() == 1 and self.gaps[g % G].fits(1)
                            and g <= pvabs(t) - 2]
                    g = cand[0] if cand else first_fit(gl + 1, 1)
                    assert g <= pvabs(t) - 2, ("softmax misses its deadline", t, T, g, pvabs(t))
                    put("valu", lambda tau, t=t, T=T, h=h: I("v_cvt_pk_bf16_f32 v%d, v%d, v%d" % (
                        P(tau, t, T >> 1) + (T & 1) * 2 + h, S(tau, t, T) + 2 * h, S(tau, t, T) + 2 * h + 1)), g)

    def inst(self, tau, lo=0, hi=15):
        out = []

        def add(ent):
            fn, wrap = ent
            tt = tau - wrap
            if lo <= tt <= hi:
                x = fn(tt)
                if x is not None:
                    out.append(x)
        for m, gp in zip(self.m, self.gaps):
            add(m)
            for e in gp.sc:
                add(e)
            for e in gp.vec:
                add(e)
            for e, _ in gp.valu:
                add(e)
        return out


def o_epilogue(NT, have_rl=True):
    p = []
    st = {}
    for u in range(4):
        for t in range(NT):
            k = u * NT + t
            tmp = VS + (k % 4) * 12
            p += conv_tile_pair([("a", (t * 8 + 2 * u) * 4), ("a", (t * 8 + 2 * u + 1) * 4)], tmp, tmp + 8,
                                "%s op_sel_hi:[1,0]" % r2("v", 228 + 2 * t))
            p += frag_io("store", r4("v", tmp + 8), SO, u * 5 + t, S_HOFF, st)
    return p


def q_load(NT, base_sgpr, idx0):
    p = []
    st = {}
    for k in range(NT * 4):
        p += frag_io("load", r4("v", VQ + k * 4), SQS, idx0 + k, base_sgpr, st)
    return p


def slow_path(NT, L):
    full = lambda: [I("s_waitcnt vmcnt(0) lgkmcnt(0)")]

    def dma(isv):
        out = []
        for pc in range(4):
            out += [I("s_add_u32 m0, s%d, %d" % (S_W4224, GRP + isv * SLOT + pc * 32)),
                    I("buffer_load_dwordx4 v%d, %s, s%d offen offset:%d lds" % (V_KVD, srd(SV if isv else SK), S_KVOFF, pc * 1024))]
        return out
    qk = lambda t, T, s4, c: mfma(r4("v", VS + T * 4), r4("v", VK + (T * 4 + s4) * 4), r4("v", VQ + (t * 4 + s4) * 4), c if s4 == 0 else None)
    p = [I("%s_slow:" % L)] + full()
    p += [I("s_mov_b32 s%d, 0" % S_HEAD)]
    p += [I("%s_slow_head:" % L),
          I("s_lshr_b32 s3, s98, s%d" % S_HEAD), I("s_and_b32 s3, s3, 1"), I("s_cmp_eq_u32 s3, 0"),
          I("s_cbranch_scc1 %s_slow_next" % L),
          I("s_mul_i32 s%d, s%d, 20480" % (S_HOFF, S_HEAD))]
    p += q_load(NT, S_HOFF, 0)
    p += [I("v_mov_b32 v%d, 0xff800000" % (228 + t)) for t in range(NT)]
    p += [I("s_lshl_b32 s%d, s%d, 18" % (S_KVOFF, S_HEAD)), I("s_mov_b32 s%d, 16" % S_CNT)] + full()
    b = [I("%s_slow_l1:" % L), I("s_barrier")] + dma(0) + full() + [I("s_barrier")]
    b += [k_read(0, T, s4) for T in range(4) for s4 in range(4)]
    for t in range(NT):
        b += [qk(t, T, s4, "0") for T in range(4) for s4 in range(4)]
        b += [I("v_max_f32 v%d, v%d, v%d" % (228 + t, 228 + t, VS + r)) for r in range(16)]
    b += full() + [I("s_add_u32 s%d, s%d, 16384" % (S_KVOFF, S_KVOFF)), I("s_sub_u32 s%d, s%d, 1" % (S_CNT, S_CNT)),
                   I("s_cmp_lg_u32 s%d, 0" % S_CNT), I("s_cbranch_scc1 %s_slow_l1" % L)]
    p.append(Loop("sl1", b, 2))
    p += cross_lane_max_to_negm(NT, 228, 236)
    p += [I("v_accvgpr_write_b32 a%d, 0" % r) for r in list(range(NT * 32)) + list(range(AL, AL + NT * 4))]
    p += [I("s_lshl_b32 s%d, s%d, 18" % (S_KVOFF, S_HEAD)), I("s_mov_b32 s%d, 16" % S_CNT)]
    b = [I("%s_slow_l2:" % L), I("s_barrier")] + dma(0) + dma(1) + full() + [I("s_barrier")]
    b += [k_read(0, T, s4) for T in range(4) for s4 in range(4)]
    b += [v_read(0, n, e, h) for n in range(8) for e in range(2) for h in range(2)]
    for t in range(NT):
        b += [qk(t, T, s4, r4("v", VNM + t * 4)) for T in range(4) for s4 in range(4)]
        b += [I("v_exp_f32 v%d, v%d" % (VS + r, VS + r)) for r in range(16)]
        b += [I("v_cvt_pk_bf16_f32 v%d, v%d, v%d" % (VP + j, VS + 2 * j, VS + 2 * j + 1)) for j in range(8)]
        for n in range(8):
            for e in range(2):
                b.append(mfma(r4("a", (t * 8 + n) * 4), r4("a", AV + (n * 2 + e) * 4), r4("v", VP + e * 4)))
        for e in range(2):
            b.append(mfma(r4("a", AL + t * 4), r4("a", AONE), r4("v", VP + e * 4)))
    b += full() + [I("s_add_u32 s%d, s%d, 16384" % (S_KVOFF, S_KVOFF)), I("s_sub_u32 s%d, s%d, 1" % (S_CNT, S_CNT)),
                   I("s_cmp_lg_u32 s%d, 0" % S_CNT), I("s_cbranch_scc1 %s_slow_l2" % L)]
    p.append(Loop("sl2", b, 2))
    p += [I("s_lshr_b32 s3, s%d, s%d" % (S_FLAG, S_HEAD)), I("s_and_b32 s3, s3, 1"), I("s_cmp_eq_u32 s3, 0"),
          I("s_cbranch_scc1 %s_slow_next" % L), I("s_nop 7")]
    p += [I("v_accvgpr_read_b32 v%d, a%d" % (228 + 2 * t, AL + 4 * t)) for t in range(NT)]
    p += [I("v_rcp_f32 v%d, v%d" % (228 + 2 * t, 228 + 2 * t)) for t in range(NT)]
    p += o_epilogue(NT)
    p += [I("%s_slow_next:" % L)] + full() + [I("s_nop 7"),
          I("s_add_u32 s%d, s%d, 1" % (S_HEAD, S_HEAD)), I("s_cmp_lt_u32 s%d, 2" % S_HEAD),
          I("s_cbranch_scc1 %s_slow_head" % L), I("s_endpgm")]
    return p


def k1_path(NT):
    L = "L%d" % (10 + NT)
    p = qproj(NT)
    pat = Pattern(NT)
    h = [I("%s_head:" % L)] + stamp()
    h += initial_max(NT)
    h += pat.inst(0) + pat.inst(1)
    h += stamp() + [I("s_mov_b32 s%d, 7" % S_CNT)]
    body = [I("%s_loop:" % L)] + pat.inst(2) + pat.inst(3)
    body += [I("s_sub_u32 s%d, s%d, 1" % (S_CNT, S_CNT)), I("s_cmp_lg_u32 s%d, 0" % S_CNT), I("s_cbranch_scc1 %s_loop" % L)]
    h.append(Loop("blk", body, 7, {"kv": 2}))
    h += stamp() + pat.inst(16)
    h += [I("v_accvgpr_read_b32 v%d, a%d" % (228 + 2 * t, AL + 4 * t)) for t in range(NT)]
    for t in range(NT):
        d = S_MSK if t == 0 else S_MSK2
        h.append(I("v_cmp_ngt_f32 s[%d:%d], s%d, v%d" % (d, d + 1, S_THR, 228 + 2 * t)))
        if t:
            h.append(I("s_or_b64 s[%d:%d], s[%d:%d], s[%d:%d]" % (S_MSK, S_MSK + 1, S_MSK, S_MSK + 1, d, d + 1)))
    h += [I("v_rcp_f32 v%d, v%d" % (228 + 2 * t, 228 + 2 * t)) for t in range(NT)]
    h += [I("s_cmp_eq_u64 s[%d:%d], 0" % (S_MSK, S_MSK + 1)), I("s_cbranch_scc1 %s_ok" % L)]
    rare = [I("s_lshl_b32 s3, 1, s%d" % S_HEAD), I("s_or_b32 s%d, s%d, s3" % (S_FLAG, S_FLAG))]
    st = {}
    for k in range(NT * 4):
        rare += frag_io("store", r4("v", VQ + k * 4), SQS, k, S_HOFF, st)
    rare += [I("s_waitcnt vmcnt(0) lgkmcnt(0)"), I("s_nop 7")]
    h.append(Cond(rare))
    h += [I("%s_ok:" % L), I("s_cmp_lg_u32 s%d, 0" % S_HEAD), I("s_cbranch_scc1 %s_last" % L)]
    h.append(Cond([I("", waittag=[("qs", 0)])] + q_load(NT, None, 20) + [I("s_branch %s_epi" % L)], "head", [0]))
    wo = [I("%s_last:" % L), I("s_waitcnt vmcnt(0)")]
    for sl in range(2):
        for pc in range(4):
            wo += [I("s_add_u32 m0, s%d, %d" % (S_W4224, sl * SLOT + pc * 32 - sl * 256 + 0)),
                   I("buffer_load_dwordx4 v%d, %s, 0 offen offset:%d lds" % (V_WOD, srd(SWO), pc * 1024 + sl * 256), tag=("wo", 0))]
    h.append(Cond(wo, "head", [1]))
    h += [I("%s_epi:" % L)]
    h += o_epilogue(NT)
    h += [I("s_add_u32 s%d, s%d, 20480" % (S_HOFF, S_HOFF)), I("s_add_u32 s%d, s%d, 1" % (S_HEAD, S_HEAD)),
          I("s_cmp_lt_u32 s%d, 2" % S_HEAD), I("s_cbranch_scc1 %s_head" % L)]
    p.append(Loop("head", h, 2, {"kv": 16}))
    p += stamp()
    p += [I("v_mov_b32 v12, %d" % FLAG_LDS), I("s_lshl_b32 s3, s%d, 2" % S_W), I("v_add_u32 v13, s3, v12"),
          I("v_mov_b32 v14, s%d" % S_FLAG), I("ds_write_b32 v13, v14")]
    p += [I("s_barrier", waittag=[("wo", 0), ("lds_all", 0)])]
    p += [I("ds_read_b128 v[12:15], v12")]
    p += [I("s_lshr_b32 s3, s%d, 1" % S_W), I("s_mul_i32 s3, s3, %d" % SLOT), I("s_and_b32 s4, s%d, 1" % S_W),
          I("s_lshl_b32 s4, s4, 9"), I("s_add_u32 s3, s3, s4"), I("v_add_u32 v%d, s3, v%d" % (V_W, V_W))]
    for nt in range(8):
        for i in range(2):
            p.append(I("ds_read_b64_tr_b16 %s, v%d offset:%d" % (r2("v", VS + nt * 4 + 2 * i), V_W, i * 256 + (nt >> 1) * 64 + (nt & 1) * 8)))
    st = {}
    for nt in range(8):
        p += frag_io("store", r4("v", VS + nt * 4), SWOT, nt, None, st)
    p += [I("v_or_b32 v12, v12, v13"), I("v_or_b32 v14, v14, v15"), I("v_or_b32 v12, v12, v14"),
          I("v_readfirstlane_b32 s98, v12")] + ([I("s_waitcnt vmcnt(0)")] if OPT["stamp"] else []) + stamp() + [I("s_cmp_lg_u32 s98, 0"), I("s_cbranch_scc1 %s_slow" % L), I("s_endpgm")]
    p.append(Cond(slow_path(NT, L)))
    return p, pat


def k2_setup():
    p = [I("s_cmp_ge_u32 s2, 256"), I("s_cbranch_scc1 L2_exit"),
         I("s_load_dwordx2 s[16:17], s[0:1], 80"), I("s_load_dwordx2 s[18:19], s[0:1], 96")]
    p += [I("s_and_b32 s3, s2, 7"), I("s_lshr_b32 s4, s2, 3"), I("s_lshr_b32 s5, s3, 2"),
          I("s_and_b32 s6, s3, 3"), I("s_lshl_b32 s6, s6, 1"), I("s_lshr_b32 s7, s4, 4"), I("s_add_u32 s6, s6, s7"),
          I("s_lshr_b32 s7, s4, 2"), I("s_and_b32 s7, s7, 3"), I("s_and_b32 s8, s4, 3"),
          I("v_lshrrev_b32 v12, 6, v0"), I("v_and_b32 v0, 63, v0"), I("v_readfirstlane_b32 s%d, v12" % S_W),
          I("v_lshlrev_b32 v%d, 4, v0" % V_L16)]
    for vq in range(4):
        p += [I("v_add_u32 v13, %d, v12" % vq), I("v_and_b32 v13, 3, v13"), I("v_lshlrev_b32 v14, 11, v13"),
              I("v_add_u32 v%d, v14, v%d" % (4 + vq, V_L16))]
        p += [I("v_mul_u32_u24 v14, 30720, v13"), I("v_add_u32 v%d, v14, v%d" % (11 if vq == 0 else 7 + vq, V_L16))]
    p += [I("v_and_b32 v13, 15, v0"), I("v_lshlrev_b32 v13, 11, v13"), I("v_lshrrev_b32 v14, 4, v0"),
          I("v_lshlrev_b32 v14, 4, v14"), I("v_lshlrev_b32 v15, 6, v12"), I("v_add3_u32 v3, v13, v14, v15")]
    p += [I("s_waitcnt lgkmcnt(0)")]
    p += [I("s_lshl_b32 s9, s5, 3"), I("s_add_u32 s9, s9, s6"), I("s_lshl_b32 s9, s9, 2"), I("s_add_u32 s9, s9, s7"),
          I("s_mul_i32 s9, s9, 655360"), I("s_mul_i32 s10, s%d, 163840" % S_W), I("s_add_u32 s9, s9, s10")]
    p += make_srd(SO, 18, "s9", 163840)
    p += [I("s_lshl_b32 s9, s5, 2"), I("s_add_u32 s9, s9, s8"), I("s_lshl_b32 s9, s9, 20"),
          I("s_lshl_b32 s10, s%d, 18" % S_W), I("s_add_u32 s9, s9, s10"), I("s_add_u32 s9, s9, %d" % WS_WOT)]
    p += make_srd(SWOT, 18, "s9", 262144)
    p += [I("s_mul_i32 s9, s6, 304"), I("s_mul_i32 s10, s7, 80"), I("s_add_u32 s9, s9, s10"), I("s_lshl_b32 s9, s9, 11"),
          I("s_lshl_b32 s10, s5, 10"), I("s_add_u32 s9, s9, s10"), I("s_lshl_b32 s10, s8, 8"), I("s_add_u32 s9, s9, s10"),
          I("s_sub_u32 s10, %d, s9" % (8 * 304 * 2048))]
    p += make_srd(SX, 16, "s9", "s10")
    p += stamp_setup(18, 1) + stamp()
    p += [I("s_cmp_eq_u32 s7, 3"), I("s_cbranch_scc1 L2_path4")]
    return p


def k2_path(NT):
    quads = [("v", b) for b in range(16, 256, 4)] + [("a", b) for b in range(160, 256, 4)]
    per = 2 * NT + 16

    def freg(sg, kind, e, idx):
        k = (sg % 3) * per + (e * NT + idx if kind == "o" else 2 * NT + e * 8 + idx)
        return r4(*quads[k])

    def loads(sg):
        order = [("w", 0, 0), ("o", 0, 0), ("w", 1, 0), ("o", 1, 0)]
        for t in range(1, NT):
            order += [("o", 0, t), ("o", 1, t)]
        for nt in range(1, 8):
            order += [("w", 0, nt), ("w", 1, nt)]
        out = []
        for kind, e, idx in order:
            ks = 2 * sg + e
            if kind == "o":
                off = (ks * 5 + idx) * 1024
                out.append((I("s_mov_b32 s%d, %d" % (S_TMP, off & ~4095)),
                            I("buffer_load_dwordx4 %s, v%d, %s, s%d offen offset:%d" % (freg(sg, kind, e, idx), V_L16, srd(SO), S_TMP, off & 4095))))
            else:
                out.append((I("s_mov_b32 s%d, %d" % (S_TMP, ks * 8192)),
                            I("buffer_load_dwordx4 %s, v%d, %s, s%d offen offset:%d" % (freg(sg, kind, e, idx), 4 + (idx >> 1), srd(SWOT), S_TMP, (idx & 1) * 1024))))
        return out
    p = []
    for sg in range(2):
        for s, l in loads(sg):
            p += [s, l]
    for sg in range(16):
        gaps = []
        for nt in range(8):
            for t in range(NT):
                for e in range(2):
                    gaps.append(Gap(mfma(r4("a", (t * 8 + nt) * 4), freg(sg, "w", e, nt), freg(sg, "o", e, t),
                                         "0" if (sg == 0 and e == 0) else None)))
        if sg + 2 < 16:
            ld = loads(sg + 2)
            for k, (s, l) in enumerate(ld):
                g = (k * len(gaps)) // len(ld)
                gaps[g].sc.append(s)
                gaps[g].vec.append(l)
        p += gaps_to_nodes(gaps)
        if sg in (0, 7, 15):
            p += stamp()
    for vq in range(1, 4):
        for t in range(NT):
            for e in range(2):
                p.append(I("ds_write_b128 v%d, %s offset:%d" % (7 + vq, r4("a", (t * 8 + 2 * vq + e) * 4), (vq - 1) * 10240 + (t * 2 + e) * 1024)))
    for t in range(NT):
        for r in range(8):
            p.append(I("v_accvgpr_read_b32 v%d, a%d" % (16 + t * 8 + r, t * 32 + r)))
    p += [I("s_barrier", waittag=[("lds_all", 0)])]
    for t in range(NT):
        for k in range(3):
            for e in range(2):
                p.append(I("ds_read_b128 %s, v11 offset:%d" % (r4("v", 64 + (t * 3 + k) * 8 + e * 4), k * 10240 + (t * 2 + e) * 1024)))
    for t in range(NT):
        for k in range(3):
            for r in range(0, 8, 2):
                p.append(I("v_pk_add_f32 %s, %s, %s" % (r2("v", 16 + t * 8 + r), r2("v", 16 + t * 8 + r), r2("v", 64 + (t * 3 + k) * 8 + r))))
        for j in range(4):
            p.append(I("v_cvt_pk_bf16_f32 v%d, v%d, v%d" % (192 + t * 4 + j, 16 + t * 8 + 2 * j, 16 + t * 8 + 2 * j + 1)))
        p += [I("s_mov_b32 s%d, %d" % (S_TMP, t * 32768)),
              I("buffer_store_dwordx4 %s, v3, %s, s%d offen" % (r4("v", 192 + t * 4), srd(SX), S_TMP))]
    p += ([I("s_waitcnt vmcnt(0)")] if OPT["stamp"] else []) + stamp()
    p += [I("s_endpgm")]
    return p


def finish(nodes, name, verbose):
    insert_waits(nodes)
    rep = []
    insert_nops(nodes, rep)
    cyc, nm = estimate_cycles(nodes)
    if verbose:
        print("%s: est %d cycles, %d mfma (%.2f/mfma), %d nop sites" % (name, cyc, nm, cyc / max(nm, 1), len(rep)), file=sys.stderr)
        if verbose > 1:
            for r in rep:
                print("   nop", r, file=sys.stderr)
    return emit(nodes)


def descriptor(name):
    return """.amdhsa_kernel %s
  .amdhsa_next_free_vgpr 512
  .amdhsa_next_free_sgpr 102
  .amdhsa_accum_offset 256
  .amdhsa_group_segment_fixed_size 0
  .amdhsa_kernarg_size 104
  .amdhsa_user_sgpr_count 2
  .amdhsa_user_sgpr_kernarg_segment_ptr 1
  .amdhsa_system_sgpr_workgroup_id_x 1
.end_amdhsa_kernel""" % name


def build(verbose=1):
    out = []
    out.append("; @launch kernel=attn_kernel grid=(256,1,1) block=(256,1,1) lds=%d" % LDS1)
    out.append("; @launch kernel=oproj_kernel grid=(256,1,1) block=(256,1,1) lds=122880")
    out.append('.amdgcn_target "amdgcn-amd-amdhsa--gfx950"')
    out.append(".text")
    for kname, setup, path, lab in (("attn_kernel", k1_setup, lambda nt: k1_path(nt)[0], "L1"), ("oproj_kernel", k2_setup, k2_path, "L2")):
        out += [".globl %s" % kname, ".p2align 8", ".type %s,@function" % kname, "%s:" % kname]
        st = setup()
        p5 = path(5)
        lines = finish(st + p5, kname + "/5", verbose)
        out += lines
        st2 = setup()
        p4 = path(4)
        finish(st2 + p4, kname + "/4", verbose)
        out += [".p2align 6", "%s_path4:" % lab, "    s_nop 4"] + emit(p4)
        out += ["%s_exit:" % lab, "    s_endpgm"]
    out += ['.section .rodata,"a"']
    for kname in ("attn_kernel", "oproj_kernel"):
        out += [".p2align 6", descriptor(kname)]
    return "\n".join(out) + "\n"


if __name__ == "__main__":
    dst = sys.argv[1] if len(sys.argv) > 1 else "cdna_kernels/%s.s" % NAME
    for a in sys.argv[2:]:
        k, v = a.split("=")
        OPT[k] = eval(v)
    open(dst, "w").write(build(verbose=1))
```

```python
import sys
def gen(name, body, iters, units_per_iter, waves=4, nvgpr=512, grid=256, lds=65536, pre=""):
    accum = 256
    s = []
    s.append(f"; @launch grid=({grid},1,1) block=({waves*64},1,1) lds={lds}")
    s.append('.amdgcn_target "amdgcn-amd-amdhsa--gfx950"')
    s.append(".text\n.globl mb_kernel\n.p2align 8\n.type mb_kernel,@function\nmb_kernel:")
    s.append("""
    s_load_dwordx2 s[4:5], s[0:1], 0
    s_load_dwordx2 s[6:7], s[0:1], 8
    s_waitcnt lgkmcnt(0)
    s_mov_b32 s8, s4
    s_mov_b32 s9, s5
    s_mov_b32 s10, 0x4000000
    s_mov_b32 s11, 0x20000
    s_mov_b32 s12, s6
    s_mov_b32 s13, s7
    s_mov_b32 s14, 0x1000000
    s_mov_b32 s15, 0x20000
    v_lshlrev_b32 v1, 4, v0
    s_lshl_b32 s3, s2, 13
    v_add_u32 v1, s3, v1
    """)
    narch = min(nvgpr, 256)
    off = 0
    for r in range(8, narch, 4):
        s.append(f"    s_mov_b32 s20, {(r//4)*65536*4 % (32<<20)}")
        s.append(f"    buffer_load_dwordx4 v[{r}:{r+3}], v1, s[8:11], s20 offen")
    s.append("    s_waitcnt vmcnt(0)")
    if nvgpr > 256:
        for r in range(0, nvgpr-256):
            s.append(f"    v_accvgpr_write_b32 a{r}, v{8 + (r % 200)}")
    s.append("    v_lshlrev_b32 v2, 4, v0")
    for i in range(0, lds // (waves*64*16)):
        s.append(f"    ds_write_b128 v2, v[{8+4*(i%40)}:{8+4*(i%40)+3}] offset:{0}")
        s.append(f"    v_add_u32 v2, {waves*64*16}, v2")
    s.append("    s_waitcnt lgkmcnt(0)")
    s.append("    v_and_b32 v3, 63, v0")
    s.append("    v_lshlrev_b32 v2, 4, v3")
    s.append("    v_lshlrev_b32 v4, 3, v3")
    s.append(pre)
    s.append("    s_barrier")
    s.append("    s_memtime s[24:25]\n    s_memrealtime s[26:27]\n    s_waitcnt lgkmcnt(0)")
    s.append(f"    s_mov_b32 s21, {iters}")
    s.append(".p2align 6\nL_loop:")
    s += ["    " + b for b in body]
    s.append("    s_sub_u32 s21, s21, 1\n    s_cmp_lg_u32 s21, 0\n    s_cbranch_scc1 L_loop")
    s.append("    s_waitcnt vmcnt(0) lgkmcnt(0)")
    s.append("    s_nop 15\n    s_nop 15")
    s.append("    s_memtime s[28:29]\n    s_memrealtime s[30:31]\n    s_waitcnt lgkmcnt(0)")
    s.append("""
    s_sub_u32 s28, s28, s24
    s_sub_u32 s30, s30, s26
    v_lshrrev_b32 v5, 6, v0
    s_mul_i32 s3, s2, %d
    v_add_u32 v5, s3, v5
    v_lshlrev_b32 v5, 4, v5
    v_mov_b32 v6, s28
    v_mov_b32 v7, s30
    v_and_b32 v3, 63, v0
    v_cmp_eq_u32 vcc, 0, v3
    s_and_saveexec_b64 s[32:33], vcc
    buffer_store_dwordx2 v[6:7], v5, s[12:15], 0 offen
    s_waitcnt vmcnt(0)
    s_endpgm
""" % waves)
    s.append(f""".section .rodata,"a"
.p2align 6
.amdhsa_kernel mb_kernel
  .amdhsa_next_free_vgpr {nvgpr}
  .amdhsa_next_free_sgpr 102
  .amdhsa_accum_offset {min(nvgpr,256)}
  .amdhsa_group_segment_fixed_size 0
  .amdhsa_kernarg_size 16
  .amdhsa_user_sgpr_count 2
  .amdhsa_user_sgpr_kernarg_segment_ptr 1
  .amdhsa_system_sgpr_workgroup_id_x 1
.end_amdhsa_kernel
""")
    open(name, "w").write("\n".join(s))

def mfma32(d, a, b, acc='v'):
    return f"v_mfma_f32_32x32x16_bf16 {acc}[{d}:{d+15}], v[{a}:{a+3}], v[{b}:{b+3}], {acc}[{d}:{d+15}]"
def mfma16(d, a, b, acc='v'):
    return f"v_mfma_f32_16x16x32_bf16 {acc}[{d}:{d+3}], v[{a}:{a+3}], v[{b}:{b+3}], {acc}[{d}:{d+3}]"
```

```python
from mbgen import *
files=[]
def m16(d,a,b,dacc='a',aacc='v',bacc='v',c=None):
    cc = f"{dacc}[{d}:{d+3}]" if c is None else c
    return f"v_mfma_f32_16x16x32_bf16 {dacc}[{d}:{d+3}], {aacc}[{a}:{a+3}], {bacc}[{b}:{b+3}], {cc}"
A=lambda n,e: 8+(n*2+e)*4
B=lambda t,e: 80+(t*2+e)*4
D=lambda n,t: (t*8+n)*4
cur=[(n,t,e) for n in range(8) for t in range(5) for e in range(2)]
pre = """s_mov_b32 m0, 0xc000
 s_and_b32 s42, s2, 7
 s_lshl_b32 s42, s42, 20
 s_mov_b32 s41, s42
 v_lshlrev_b32 v1, 4, v0
"""
def mk(name, tr=0, b128=0, dma=0, ex=0, cvt=0, add=0, big=False, iters=150, nomf=False, flags=""):
    fill = [[] for _ in range(80)]
    for i in range(tr):
        n = (i // 4 + 2) % 8
        fill[(i // 4) * 10 + 1 + (i % 4) // 2].append(f"ds_read_b64_tr_b16 v[{A(n,0)+2*(i%4)}:{A(n,0)+2*(i%4)+1}], v4 offset:{(i*1536)%49152}")
    for i in range(b128):
        n = (i // 2 + 2) % 8
        fill[(i // 2) % 8 * 10 + 1 + (i % 2)].append(f"ds_read_b128 v[{A(n,i%2)}:{A(n,i%2)+3}], v2 offset:{(i*3072)%49152}")
    for i in range(dma):
        g = i * 80 // dma + 4
        m = 0x1ffffff if big else 0xfffff
        fill[g - 1].append(f"s_add_u32 s41, s41, 0x1000" if not big else "s_add_u32 s41, s41, 0x100000")
        fill[g].append(f"buffer_load_dwordx4 v1, s[8:11], s41 offen {flags} lds")
        fill[g + 1].append(f"s_and_b32 s41, s41, {m}" if big else "s_bitset0_b32 s41, 19")
    free = [g for g in range(80) if not fill[g]]
    k = 0
    for i in range(ex):
        fill[free[k]].append(f"v_exp_f32 v{128+i%32}, v{160+i%40}"); k += 1
    rest = [f"v_cvt_pk_bf16_f32 v{200+i%20}, v{128+(2*i)%32}, v{129+(2*i)%32}" for i in range(cvt)] + [f"v_add_f32 v{224+i%4}, v{224+i%4}, v{128+i%32}" for i in range(add)]
    for i in range(0, len(rest), 2):
        fill[free[k]] += rest[i:i+2]; k += 1
    body = []
    for j, (n, t, e) in enumerate(cur):
        if j % 10 == 0 and (tr or b128): body.append("s_waitcnt lgkmcnt(4)" if tr else "s_waitcnt lgkmcnt(2)")
        body.append(m16(D(n,t),A(n,e),B(t,e)))
        body += fill[j]
    if dma: body.append(f"s_waitcnt vmcnt({min(63,2*dma)})")
    p = pre
    if big: p = "s_mov_b32 m0, 0xc000\n s_lshl_b32 s41, s2, 12\n v_lshlrev_b32 v1, 4, v0\n"
    gen(name, body, iters, 80, waves=4, nvgpr=512, pre=p)
    files.append(name)
mk("r_bare.s")
mk("r_tr32.s", tr=32)
mk("r_b16.s", b128=16)
mk("r_dma9.s", dma=9)
mk("r_dma9nt.s", dma=9, flags="nt")
mk("r_dma4big.s", dma=4, big=True, flags="nt")
mk("r_tr32dma9.s", tr=32, dma=9)
mk("r_exp40.s", ex=40)
mk("r_cvt20.s", cvt=20)
mk("r_add32.s", add=32)
mk("r_valu.s", ex=40, cvt=20, add=32)
print(" ".join(files))
```

```python
from mbgen import *
files=[]
def m16(d,a,b): return f"v_mfma_f32_16x16x32_bf16 v[{d}:{d+3}], a[{a}:{a+3}], a[{b}:{b+3}], v[{d}:{d+3}]"
def op(k,i):
    if k=='t': return f"ds_read_b64_tr_b16 a[{128+2*(i%16)}:{129+2*(i%16)}], v4 offset:{(i%8)*256}"
    if k=='d': return f"ds_read_b128 a[{160+4*(i%8)}:{163+4*(i%8)}], v2 offset:{(i%8)*1024}"
    if k=='a': return f"v_add_f32 v{200+i%4}, v{200+i%4}, v{210+i%16}"
    if k=='c': return f"v_cvt_pk_bf16_f32 v{230+i%8}, v{210+i%14}, v{211+i%14}"
    if k=='e': return f"v_exp_f32 v{240+i%8}, v{210+i%16}"
    if k=='s': return "s_add_u32 s40, s40, 1"
    if k=='w': return "s_waitcnt lgkmcnt(6)"
pre=" v_lshrrev_b32 v4, 2, v3\n v_mul_u32_u24 v4, 1056, v4\n v_and_b32 v5, 3, v3\n v_lshl_add_u32 v4, v5, 3, v4\n"
def mk(name, pat):
    body=[]; c=0
    for m in range(120):
        body.append(m16(16+(m//2%30)*4, (m%16)*4, 64+(m%10)*4))
        for k in pat[m % len(pat)]:
            body.append(op(k,c)); c+=1
    gen(name, body, 60, 120, waves=4, nvgpr=512, pre=pre)
    files.append(name)
P=dict(ta_e=['ta','e'], tt_e=['tt','e'], ac_e=['ac','e'], t_e=['t','e'], ta_ta=['ta'], aa_ta=['aa','ta'], aa=['aa'], e=['e'], da_e=['da','e'], t_aa=['t','aa'], sac_e=['sac','e'], ac_se=['ac','se'], wta_e=['wta','e'], tt_aa=['tt','aa'], ta_0=['ta',''], tt_0=['tt',''])
for k,v in P.items(): mk("u_%s.s"%k, v)
print(" ".join(files))
```
